```python
import torch

def _softmax(x, axis=-1):
    return torch.softmax(x, dim=axis)

def _gelu(x):
    return torch.nn.functional.gelu(x, approximate='tanh')

def _silu(x):
    return torch.nn.functional.silu(x)

def _sigmoid(x):
    return torch.sigmoid(x)

def _layernorm(x, axis=-1, eps=1e-05):
    m = x.mean(dim=axis, keepdim=True)
    v = x.var(dim=axis, keepdim=True, unbiased=False)
    return (x - m) / torch.sqrt(v + eps)

def _scatter_add(tgt, idx, src, axis=0):
    return tgt.clone().index_add_(axis, idx, src)

def _segment_sum(src, seg, n):
    out = torch.zeros((n,) + src.shape[1:], dtype=src.dtype)
    return out.index_add_(0, seg, src)

def _pad(x, pw):
    flat = tuple((v for pair in reversed(pw) for v in pair))
    return torch.nn.functional.pad(x, flat)
kernel_name = 'standalone__tree_speculative_verify_tree_attention_over_candidate_token_tree__decode'

def setup_inputs():

    _w = lambda a: (lambda t: t.to(torch.bfloat16) if t.is_floating_point() else t)(torch.as_tensor(a))
    B, Hq, Hkv, T, C, D = (1, 32, 16, 1, 8192, 128)
    tree_mask = torch.zeros((B, T, T), dtype=float)
    for b in range(B):
        parent = torch.zeros(T, dtype=torch.int64)
        for i in range(1, T):
            parent[i] = int(torch.randint(0, i, (1,)).item())
        for i in range(T):
            j = i
            tree_mask[b, i, j] = 1.0
            while j > 0:
                j = parent[j]
                tree_mask[b, i, j] = 1.0
    return {'q': _w((lambda *s: torch.randn(*s, dtype=torch.bfloat16) * 0.8)(B, Hq, T, D)), 'k_cache': _w((lambda *s: torch.randn(*s, dtype=torch.bfloat16) * 0.8)(B, Hkv, C, D)), 'v_cache': _w((lambda *s: torch.randn(*s, dtype=torch.bfloat16) * 0.05)(B, Hkv, C, D)), 'k_tree': _w((lambda *s: torch.randn(*s, dtype=torch.bfloat16) * 0.8)(B, Hkv, T, D)), 'v_tree': _w((lambda *s: torch.randn(*s, dtype=torch.bfloat16) * 0.05)(B, Hkv, T, D)), 'tree_mask': _w(tree_mask)}

def reference(q, k_cache, v_cache, k_tree, v_tree, tree_mask):
    B, Hq, T, D = q.shape
    Hkv, C = (k_cache.shape[1], k_cache.shape[2])
    rep = Hq // Hkv
    kc = (lambda x, n, axis: torch.repeat_interleave(x, n, dim=axis))(k_cache, rep, axis=1)
    vc = (lambda x, n, axis: torch.repeat_interleave(x, n, dim=axis))(v_cache, rep, axis=1)
    kt = (lambda x, n, axis: torch.repeat_interleave(x, n, dim=axis))(k_tree, rep, axis=1)
    vt = (lambda x, n, axis: torch.repeat_interleave(x, n, dim=axis))(v_tree, rep, axis=1)
    k = torch.concatenate([kc, kt], axis=2)
    v = torch.concatenate([vc, vt], axis=2)
    scale = D ** (-0.5)
    scores = torch.einsum('bhqd,bhkd->bhqk', q, k) * scale
    ctx_mask = torch.ones((B, 1, T, C), dtype=scores.dtype)
    tm = tree_mask[:, None, :, :].clone()
    full_mask = torch.concatenate([ctx_mask, tm], axis=-1)
    scores = scores + (1.0 - full_mask) * -1000000000.0
    p = _softmax(scores, axis=-1)
    return torch.einsum('bhqk,bhkd->bhqd', p, v)
```

```python
import math, struct
KNAME = "standalone__tree_speculative_verify_tree_attention_over_candidate_token_tree__decode"
HEADER = open("cdna_kernels/%s.s.ref" % KNAME).read().split("; Override launch")[0]

def f2u(x):
    return struct.unpack("<I", struct.pack("<f", x))[0]

SCALE = 128 ** -0.5
LOG2E = math.log2(math.e)
C_QK = SCALE * LOG2E
C_MASK = -1.0e9 * LOG2E

class Asm:
    def __init__(self):
        self.lines = []
    def __call__(self, s=""):
        for l in s.split("\n"):
            self.lines.append("    " + l.strip() if not l.strip().endswith(":") else l.strip())
    def text(self):
        return "\n".join(self.lines) + "\n"

def wrap(body, grid, block, lds, nvgpr, nsgpr=96, accum=None, kname=KNAME + "_kernel", extra_desc=""):
    if accum is None:
        accum = (nvgpr + 3) // 4 * 4
    s = HEADER
    s += "; @launch grid=(%d,1,1) block=(%d,1,1) lds=%d\n" % (grid, block, lds)
    s += '.amdgcn_target "amdgcn-amd-amdhsa--gfx950"\n.text\n'
    s += ".globl %s\n.p2align 8\n.type %s,@function\n%s:\n" % (kname, kname, kname)
    s += body
    s += '.section .rodata,"a"\n.p2align 6\n.amdhsa_kernel %s\n' % kname
    s += "  .amdhsa_next_free_vgpr %d\n  .amdhsa_next_free_sgpr %d\n  .amdhsa_accum_offset %d\n" % (nvgpr, nsgpr, accum)
    s += "  .amdhsa_group_segment_fixed_size 0\n  .amdhsa_kernarg_size 72\n  .amdhsa_user_sgpr_count 2\n"
    s += "  .amdhsa_user_sgpr_kernarg_segment_ptr 1\n  .amdhsa_system_sgpr_workgroup_id_x 1\n"
    s += extra_desc
    s += ".end_amdhsa_kernel\n"
    return s
```

```python
import sys
from common import *

def gen(NW=16, G=8, NT="nt"):
    NSPLIT = 8192 // (NW * G * 4)
    NWG = 16 * NSPLIT
    WGBYTES = NW * G * 1024
    a = Asm()
    Q, K, V, KT, VT, MK, OUT, DBG, WS = "s[4:5]", "s[6:7]", "s[8:9]", "s[10:11]", "s[12:13]", "s[14:15]", "s[16:17]", "s[18:19]", "s[20:21]"
    vK = 16
    vV = vK + 4 * G
    vS = vV + 4 * G
    nv = vS + 4 * G
    vQ = 4
    vM = 8
    vA = 12
    a("s_load_dwordx16 s[4:19], s[0:1], 0")
    a("s_load_dwordx2 s[20:21], s[0:1], 64")
    a("s_cmp_ge_u32 s2, %d" % NWG)
    a("s_cbranch_scc1 L_end")
    a("v_and_b32 v1, 63, v0")
    a("v_lshrrev_b32 v2, 6, v0")
    a("s_mul_i32 s22, s2, %d" % WGBYTES)
    a("s_add_u32 s22, s22, 4096")
    a("v_readfirstlane_b32 s23, v2")
    a("s_lshr_b32 s24, s2, %d" % (NSPLIT.bit_length() - 1))
    a("s_mul_i32 s25, s23, %d" % (G * 1024))
    a("s_add_u32 s22, s22, s25")
    a("v_lshrrev_b32 v2, 4, v1")
    a("v_and_b32 v3, 3, v1")
    a("v_lshlrev_b32 v2, 6, v2")
    a("v_lshl_add_u32 v2, v3, 4, v2")
    a("v_bfe_u32 v3, v1, 3, 1")
    a("v_lshl_add_u32 v3, v3, 8, v2")
    a("s_lshl_b32 s25, s24, 9")
    a("v_add_u32 v3, s25, v3")
    a("v_bfe_u32 v8, v1, 2, 2")
    a("v_lshl_add_u32 v8, v8, 8, v2")
    a("v_add_u32 v8, s22, v8")
    a("v_lshl_add_u32 v9, v1, 4, s22")
    a("s_waitcnt lgkmcnt(0)")
    a("global_load_dwordx4 v[%d:%d], v3, %s" % (vQ, vQ + 3, Q))
    def addr(g, base):
        blk = g // 8
        return blk, (g % 8) * 1024 - 4096
    for g in range(G):
        if g and g % 8 == 0:
            a("v_add_u32 v8, 8192, v8")
        a("global_load_dwordx4 v[%d:%d], v8, %s offset:%d %s" % (vK + 4 * g, vK + 4 * g + 3, K, (g % 8) * 1024 - 4096, NT))
    for g in range(G):
        if g and g % 8 == 0:
            a("v_add_u32 v9, 8192, v9")
        a("global_load_dwordx4 v[%d:%d], v9, %s offset:%d %s" % (vV + 4 * g, vV + 4 * g + 3, V, (g % 8) * 1024 - 4096, NT))
    a("v_and_b32 v3, 1, v1")
    a("v_lshlrev_b32 v3, 4, v3")
    a("v_mov_b32 v12, 0xffff")
    a("v_lshlrev_b32 v3, v3, v12")
    a("v_bfe_u32 v12, v1, 1, 2")
    for i in range(4):
        a("v_cmp_eq_u32 vcc, %d, v12" % i)
        a("s_nop 1")
        a("v_cndmask_b32 v%d, 0, v3, vcc" % (vM + i))
    a("s_mov_b32 s26, 0x%08x" % f2u(C_QK))
    for g in range(G):
        a("s_waitcnt vmcnt(%d)" % (2 * G - 1 - g))
        a("v_mfma_f32_16x16x32_bf16 v[%d:%d], v[%d:%d], v[%d:%d], 0" % (vS + 4 * g, vS + 4 * g + 3, vK + 4 * g, vK + 4 * g + 3, vQ, vQ + 3))
    a("s_nop 7")
    dpp = lambda p: "quad_perm:[%d,%d,%d,%d] row_mask:0xf bank_mask:0xf" % (p, p, p, p)
    for g in range(G):
        b = vS + 4 * g
        a("v_add_f32_dpp v%d, v%d, v%d %s" % (b + 1, b, b + 1, dpp(0)))
        a("v_add_f32_dpp v%d, v%d, v%d %s" % (b + 3, b + 2, b + 3, dpp(2)))
    a("s_nop 1")
    for g in range(G):
        b = vS + 4 * g
        a("v_add_f32_dpp v%d, v%d, v%d %s" % (b, b + 1, b + 3, dpp(1)))
    a("v_max_f32 v2, v%d, v%d" % (vS, vS + 4))
    for g in range(2, G, 2):
        a("v_max3_f32 v2, v2, v%d, v%d" % (vS + 4 * g, vS + 4 * g + 4))
    a("v_mov_b32 v3, v2")
    a("s_nop 1")
    a("v_permlane32_swap_b32 v2, v3")
    a("v_max_f32 v2, v2, v3")
    a("v_mov_b32 v3, v2")
    a("s_nop 1")
    a("v_permlane16_swap_b32 v2, v3")
    a("v_max_f32 v2, v2, v3")
    a("v_mul_f32 v2, s26, v2")
    for g in range(G):
        b = vS + 4 * g
        a("v_fma_f32 v%d, v%d, s26, -v2" % (b, b))
    a("s_nop 1")
    for g in range(G):
        b = vS + 4 * g
        a("v_exp_f32_dpp v%d, v%d %s" % (b + 1, b, dpp(3)))
    a("s_nop 0")
    a("v_add_f32 v3, v%d, v%d" % (vS + 1, vS + 5))
    for g in range(2, G):
        a("v_add_f32 v3, v3, v%d" % (vS + 4 * g + 1))
    for g in range(G):
        b = vS + 4 * g
        a("v_cvt_pk_bf16_f32 v%d, v%d, v%d" % (b + 3, b + 1, b + 1))
    a("v_mov_b32 v4, v3")
    a("s_nop 1")
    a("v_permlane32_swap_b32 v3, v4")
    a("v_add_f32 v3, v3, v4")
    a("v_mov_b32 v4, v3")
    a("s_nop 1")
    a("v_permlane16_swap_b32 v3, v4")
    a("v_add_f32 v3, v3, v4")
    for g in range(G):
        b = vS + 4 * g
        for i in range(4):
            a("v_and_b32 v%d, v%d, v%d" % (b + i, b + 3, vM + i))
    MLB = NW * 1024
    a("s_lshl_b32 s25, s23, 4")
    a("v_and_b32 v4, 8, v1")
    a("v_add_u32 v4, s25, v4")
    a("v_and_b32 v5, 0x37, v1")
    a("v_cmp_eq_u32 vcc, 3, v5")
    a("s_and_saveexec_b64 s[28:29], vcc")
    a("ds_write_b64 v4, v[2:3] offset:%d" % MLB)
    a("s_mov_b64 exec, s[28:29]")
    for g in range(G):
        a("s_waitcnt vmcnt(%d)" % (G - 1 - g))
        b = vS + 4 * g
        a("v_mfma_f32_16x16x32_bf16 v[%d:%d], v[%d:%d], v[%d:%d], %s" % (vA, vA + 3, b, b + 3, vV + 4 * g, vV + 4 * g + 3, "0" if g == 0 else "v[%d:%d]" % (vA, vA + 3)))
    a("v_lshlrev_b32 v4, 4, v0")
    a("s_nop 7")
    a("ds_write_b128 v4, v[%d:%d]" % (vA, vA + 3))
    a("s_waitcnt lgkmcnt(0)")
    a("s_barrier")
    a("s_cmp_lg_u32 s23, 0")
    a("s_cbranch_scc1 L_end")
    def combine(n, mlreg, oreg, extra=False):
        a("v_max_f32 v2, v%d, v%d" % (mlreg, mlreg + 2))
        i = 2
        while i < n:
            if i + 1 < n:
                a("v_max3_f32 v2, v2, v%d, v%d" % (mlreg + 2 * i, mlreg + 2 * i + 2)); i += 2
            else:
                a("v_max_f32 v2, v2, v%d" % (mlreg + 2 * i)); i += 1
        for i in range(n):
            a("v_sub_f32 v%d, v%d, v2" % (mlreg + 2 * i, mlreg + 2 * i))
        for i in range(n):
            a("v_exp_f32 v%d, v%d" % (mlreg + 2 * i, mlreg + 2 * i))
        a("s_nop 0")
        a("v_mul_f32 v3, v%d, v%d" % (mlreg, mlreg + 1))
        for i in range(1, n):
            a("v_fmac_f32 v3, v%d, v%d" % (mlreg + 2 * i, mlreg + 2 * i + 1))
        for r in range(4):
            a("v_mul_f32 v%d, v%d, v%d" % (vA + r, mlreg, oreg + r))
        for i in range(1, n):
            for r in range(4):
                a("v_fmac_f32 v%d, v%d, v%d" % (vA + r, mlreg + 2 * i, oreg + 4 * i + r))
    NMAX = max(NW, NSPLIT + 1)
    vML = 16
    vO = vML + 2 * NMAX + (2 * NMAX) % 4
    nv = max(nv, vO + 4 * NMAX)
    a("v_lshrrev_b32 v5, 5, v1")
    a("v_lshlrev_b32 v5, 3, v5")
    for w in range(NW):
        a("ds_read_b64 v[%d:%d], v5 offset:%d" % (vML + 2 * w, vML + 2 * w + 1, MLB + 16 * w))
        a("ds_read_b128 v[%d:%d], v4 offset:%d" % (vO + 4 * w, vO + 4 * w + 3, 1024 * w))
        if w % 4 == 3:
            a("s_waitcnt lgkmcnt(0)")
    a("s_waitcnt lgkmcnt(0)")
    combine(NW, vML, vO)
    a("s_lshl_b32 s25, s2, 11")
    a("v_add_u32 v6, s25, v4")
    a("v_add_u32 v7, s25, v5")
    a("global_store_dwordx4 v6, v[%d:%d], %s sc1" % (vA, vA + 3, WS))
    a("global_store_dwordx2 v7, v[2:3], %s offset:1024 sc1" % WS)
    a("s_waitcnt vmcnt(0)")
    a("s_lshl_b32 s25, s24, 2")
    a("v_mov_b32 v6, s25")
    a("v_mov_b32 v7, 1")
    a("s_mov_b64 exec, 1")
    a("global_atomic_add v7, v6, v7, %s sc0 sc1" % DBG)
    a("s_waitcnt vmcnt(0)")
    a("v_readfirstlane_b32 s25, v7")
    a("s_mov_b64 exec, -1")
    a("s_cmp_lg_u32 s25, %d" % (NSPLIT - 1))
    a("s_cbranch_scc1 L_end")
    a("s_load_dword s27, %s, 0" % MK)
    a("s_mul_i32 s25, s24, %d" % (NSPLIT * 2048))
    a("v_add_u32 v6, s25, v4")
    a("v_add_u32 v7, s25, v5")
    for i in range(NSPLIT):
        if i and i % 2 == 0:
            a("v_add_u32 v6, 4096, v6")
            a("v_add_u32 v7, 4096, v7")
        a("global_load_dwordx4 v[%d:%d], v6, %s offset:%d sc1" % (vO + 4 * i, vO + 4 * i + 3, WS, (i % 2) * 2048))
        a("global_load_dwordx2 v[%d:%d], v7, %s offset:%d sc1" % (vML + 2 * i, vML + 2 * i + 1, WS, (i % 2) * 2048 + 1024))
    a("v_lshrrev_b32 v2, 4, v1")
    a("v_and_b32 v3, 3, v1")
    a("v_lshlrev_b32 v2, 6, v2")
    a("v_lshl_add_u32 v2, v3, 4, v2")
    a("v_bfe_u32 v3, v1, 3, 1")
    a("v_lshl_add_u32 v3, v3, 8, v2")
    a("s_lshl_b32 s25, s24, 9")
    a("v_add_u32 v3, s25, v3")
    a("s_lshl_b32 s25, s24, 8")
    a("v_add_u32 v2, s25, v2")
    a("global_load_dwordx4 v[8:11], v3, %s" % Q)
    a("global_load_dwordx4 v[12:15], v2, %s" % KT)
    a("v_and_b32 v2, 15, v1")
    a("v_bfe_u32 v3, v1, 4, 1")
    a("v_lshlrev_b32 v3, 3, v3")
    a("v_lshl_add_u32 v2, v2, 4, v3")
    a("v_add_u32 v3, s25, v2")
    t = vO + 4 * NSPLIT
    a("global_load_dwordx2 v[%d:%d], v3, %s" % (t + 2, t + 3, VT))
    a("v_lshl_add_u32 v4, v5, 5, v2")
    a("s_lshl_b32 s25, s24, 9")
    a("v_add_u32 v4, s25, v4")
    a("s_waitcnt vmcnt(0) lgkmcnt(0)")
    d = nv; nv += 4
    a("v_mfma_f32_16x16x32_bf16 v[%d:%d], v[12:15], v[8:11], 0" % (d, d + 3))
    a("v_lshlrev_b32 v%d, 16, v%d" % (t, t + 2))
    a("v_and_b32 v%d, 0xffff0000, v%d" % (t + 1, t + 2))
    a("v_lshlrev_b32 v%d, 16, v%d" % (t + 2, t + 3))
    a("v_and_b32 v%d, 0xffff0000, v%d" % (t + 3, t + 3))
    a("s_lshl_b32 s27, s27, 16")
    a("v_sub_f32 v6, 1.0, s27")
    a("v_mul_f32 v6, 0x%08x, v6" % f2u(C_MASK))
    a("s_nop 3")
    a("v_add_f32_dpp v9, v%d, v%d %s" % (d, d + 1, dpp(0)))
    a("v_add_f32_dpp v11, v%d, v%d %s" % (d + 2, d + 3, dpp(2)))
    a("s_nop 1")
    a("v_add_f32_dpp v8, v9, v11 %s" % dpp(1))
    a("v_fma_f32 v8, v8, s26, v6")
    a("s_nop 0")
    a("v_readlane_b32 s28, v8, 3")
    a("v_readlane_b32 s29, v8, 11")
    a("v_cmp_gt_u32 vcc, 32, v1")
    a("s_nop 1")
    a("v_mov_b32 v6, s29")
    a("v_mov_b32 v7, s28")
    a("v_cndmask_b32 v%d, v6, v7, vcc" % (vML + 2 * NSPLIT))
    a("v_mov_b32 v%d, 1.0" % (vML + 2 * NSPLIT + 1))
    combine(NSPLIT + 1, vML, vO)
    a("v_rcp_f32 v3, v3")
    a("s_nop 0")
    for r in range(4):
        a("v_mul_f32 v%d, v3, v%d" % (vA + r, vA + r))
    a("v_cvt_pk_bf16_f32 v12, v12, v13")
    a("v_cvt_pk_bf16_f32 v13, v14, v15")
    a("global_store_dwordx2 v4, v[12:13], %s" % OUT)
    a("L_end:")
    a("s_endpgm")
    return wrap(a.text(), NWG, NW * 64, NW * 1024 + NW * 16, nv)

if __name__ == "__main__":
    NW = int(sys.argv[1]); G = int(sys.argv[2]); NT = sys.argv[3] if len(sys.argv) > 3 else "nt"
    if NT == "-": NT = ""
    sys.stdout.write(gen(NW, G, NT))
```

```python
import math, struct
KNAME = "standalone__tree_speculative_verify_tree_attention_over_candidate_token_tree__decode"
HEADER = open("cdna_kernels/%s.s.ref" % KNAME).read().split("; Override launch")[0]

def f2u(x):
    return struct.unpack("<I", struct.pack("<f", x))[0]

SCALE = 128 ** -0.5
LOG2E = math.log2(math.e)
C_QK = SCALE * LOG2E
C_MASK = -1.0e9 * LOG2E

class Asm:
    def __init__(self):
        self.lines = []
    def __call__(self, s=""):
        for l in s.split("\n"):
            self.lines.append("    " + l.strip() if not l.strip().endswith(":") else l.strip())
    def text(self):
        return "\n".join(self.lines) + "\n"

def wrap(body, grid, block, lds, nvgpr, nsgpr=96, accum=None, kname=KNAME + "_kernel", extra_desc=""):
    if accum is None:
        accum = (nvgpr + 3) // 4 * 4
    s = HEADER
    s += "; @launch grid=(%d,1,1) block=(%d,1,1) lds=%d\n" % (grid, block, lds)
    s += '.amdgcn_target "amdgcn-amd-amdhsa--gfx950"\n.text\n'
    s += ".globl %s\n.p2align 8\n.type %s,@function\n%s:\n" % (kname, kname, kname)
    s += body
    s += '.section .rodata,"a"\n.p2align 6\n.amdhsa_kernel %s\n' % kname
    s += "  .amdhsa_next_free_vgpr %d\n  .amdhsa_next_free_sgpr %d\n  .amdhsa_accum_offset %d\n" % (nvgpr, nsgpr, accum)
    s += "  .amdhsa_group_segment_fixed_size 0\n  .amdhsa_kernarg_size 72\n  .amdhsa_user_sgpr_count 2\n"
    s += "  .amdhsa_user_sgpr_kernarg_segment_ptr 1\n  .amdhsa_system_sgpr_workgroup_id_x 1\n"
    s += extra_desc
    s += ".end_amdhsa_kernel\n"
    return s


class Stamps:
    def __init__(self, a, on, base=48, n=14):
        self.a, self.on, self.base, self.n = a, on, base, n
    def init(self):
        if not self.on: return
        self.a("s_memrealtime s[%d:%d]" % (self.base, self.base + 1))
        for i in range(1, self.n):
            self.a("s_mov_b64 s[%d:%d], 0" % (self.base + 2 * i, self.base + 2 * i + 1))
    def __call__(self, i):
        if not self.on: return
        self.a("s_memrealtime s[%d:%d]" % (self.base + 2 * i, self.base + 2 * i + 1))
    def dump(self, wave_sgpr, nw, ws, off=0x8000000):
        if not self.on: return
        a = self.a
        a("s_waitcnt vmcnt(0)")
        self(self.n - 1)
        a("s_mul_i32 s44, s2, %d" % nw)
        a("s_add_u32 s44, s44, %s" % wave_sgpr)
        a("s_lshl_b32 s44, s44, 7")
        a("s_add_u32 s44, s44, 0x%x" % off)
        a("s_mov_b64 exec, 1")
        a("v_mov_b32 v1, s44")
        a("s_getreg_b32 s45, hwreg(HW_REG_XCC_ID)")
        a("s_getreg_b32 s46, hwreg(HW_REG_HW_ID)")
        a("s_waitcnt lgkmcnt(0)")
        for i in range(self.n):
            a("v_mov_b32 v2, s%d" % (self.base + 2 * i))
            a("v_mov_b32 v3, s%d" % (self.base + 2 * i + 1))
            a("global_store_dwordx2 v1, v[2:3], %s offset:%d" % (ws, 8 * i))
        a("v_mov_b32 v2, s45")
        a("v_mov_b32 v3, s46")
        a("global_store_dwordx2 v1, v[2:3], %s offset:%d" % (ws, 8 * 15))

    def encode(self, idx, X=4000, k=1):
        a = self.a
        b = self.base
        a("s_waitcnt vmcnt(0)")
        self(self.n - 1)
        a("s_waitcnt lgkmcnt(0)")
        a("s_sub_u32 s44, s%d, s%d" % (b + 2 * idx, b))
        a("s_cmp_eq_u32 s%d, 0" % (b + 2 * idx))
        a("s_cselect_b32 s44, 0, s44")
        a("s_mul_i32 s44, s44, %d" % k)
        a("s_add_u32 s44, s44, %d" % X)
        a("L_spin:")
        a("s_memrealtime s[46:47]")
        a("s_waitcnt lgkmcnt(0)")
        a("s_sub_u32 s45, s46, s%d" % b)
        a("s_cmp_lt_u32 s45, s44")
        a("s_cbranch_scc1 L_spin")
```

```python
import sys
from common import *

def gen(NW=16, G=8, NT="nt", ST=False):
    NSPLIT = 8192 // (NW * G * 4)
    NWG = 16 * NSPLIT
    WGBYTES = NW * G * 1024
    a = Asm()
    Q, K, V, KT, VT, MK, OUT, DBG, WS = "s[4:5]", "s[6:7]", "s[8:9]", "s[10:11]", "s[12:13]", "s[14:15]", "s[16:17]", "s[18:19]", "s[20:21]"
    vK = 16
    vV = vK + 4 * G
    vS = vV + 4 * G
    nv = vS + 4 * G
    vQ = 4
    vM = 8
    vA = 12
    st = Stamps(a, ST)
    st.init()
    a("s_load_dwordx16 s[4:19], s[0:1], 0")
    a("s_load_dwordx2 s[20:21], s[0:1], 64")
    a("s_cmp_ge_u32 s2, %d" % NWG)
    a("s_cbranch_scc1 L_exit")
    a("v_and_b32 v1, 63, v0")
    a("v_lshrrev_b32 v2, 6, v0")
    a("s_mul_i32 s22, s2, %d" % WGBYTES)
    a("s_add_u32 s22, s22, 4096")
    a("v_readfirstlane_b32 s23, v2")
    a("s_lshr_b32 s24, s2, %d" % (NSPLIT.bit_length() - 1))
    a("s_mul_i32 s25, s23, %d" % (G * 1024))
    a("s_add_u32 s22, s22, s25")
    a("v_lshrrev_b32 v2, 4, v1")
    a("v_and_b32 v3, 3, v1")
    a("v_lshlrev_b32 v2, 6, v2")
    a("v_lshl_add_u32 v2, v3, 4, v2")
    a("v_bfe_u32 v3, v1, 3, 1")
    a("v_lshl_add_u32 v3, v3, 8, v2")
    a("s_lshl_b32 s25, s24, 9")
    a("v_add_u32 v3, s25, v3")
    a("v_bfe_u32 v8, v1, 2, 2")
    a("v_lshl_add_u32 v8, v8, 8, v2")
    a("v_add_u32 v8, s22, v8")
    a("v_lshl_add_u32 v9, v1, 4, s22")
    a("s_waitcnt lgkmcnt(0)")
    st(1)
    a("global_load_dwordx4 v[%d:%d], v3, %s" % (vQ, vQ + 3, Q))
    def addr(g, base):
        blk = g // 8
        return blk, (g % 8) * 1024 - 4096
    for g in range(G):
        if g and g % 8 == 0:
            a("v_add_u32 v8, 8192, v8")
        a("global_load_dwordx4 v[%d:%d], v8, %s offset:%d %s" % (vK + 4 * g, vK + 4 * g + 3, K, (g % 8) * 1024 - 4096, NT))
    for g in range(G):
        if g and g % 8 == 0:
            a("v_add_u32 v9, 8192, v9")
        a("global_load_dwordx4 v[%d:%d], v9, %s offset:%d %s" % (vV + 4 * g, vV + 4 * g + 3, V, (g % 8) * 1024 - 4096, NT))
    st(2)
    a("v_and_b32 v3, 1, v1")
    a("v_lshlrev_b32 v3, 4, v3")
    a("v_mov_b32 v12, 0xffff")
    a("v_lshlrev_b32 v3, v3, v12")
    a("v_bfe_u32 v12, v1, 1, 2")
    for i in range(4):
        a("v_cmp_eq_u32 vcc, %d, v12" % i)
        a("s_nop 1")
        a("v_cndmask_b32 v%d, 0, v3, vcc" % (vM + i))
    a("s_mov_b32 s26, 0x%08x" % f2u(C_QK))
    for g in range(G):
        a("s_waitcnt vmcnt(%d)" % (2 * G - 1 - g))
        a("v_mfma_f32_16x16x32_bf16 v[%d:%d], v[%d:%d], v[%d:%d], 0" % (vS + 4 * g, vS + 4 * g + 3, vK + 4 * g, vK + 4 * g + 3, vQ, vQ + 3))
    st(3)
    a("s_nop 7")
    dpp = lambda p: "quad_perm:[%d,%d,%d,%d] row_mask:0xf bank_mask:0xf" % (p, p, p, p)
    for g in range(G):
        b = vS + 4 * g
        a("v_add_f32_dpp v%d, v%d, v%d %s" % (b + 1, b, b + 1, dpp(0)))
        a("v_add_f32_dpp v%d, v%d, v%d %s" % (b + 3, b + 2, b + 3, dpp(2)))
    a("s_nop 1")
    for g in range(G):
        b = vS + 4 * g
        a("v_add_f32_dpp v%d, v%d, v%d %s" % (b, b + 1, b + 3, dpp(1)))
    a("v_max_f32 v2, v%d, v%d" % (vS, vS + 4))
    for g in range(2, G, 2):
        a("v_max3_f32 v2, v2, v%d, v%d" % (vS + 4 * g, vS + 4 * g + 4))
    a("v_mov_b32 v3, v2")
    a("s_nop 1")
    a("v_permlane32_swap_b32 v2, v3")
    a("v_max_f32 v2, v2, v3")
    a("v_mov_b32 v3, v2")
    a("s_nop 1")
    a("v_permlane16_swap_b32 v2, v3")
    a("v_max_f32 v2, v2, v3")
    a("v_mul_f32 v2, s26, v2")
    for g in range(G):
        b = vS + 4 * g
        a("v_fma_f32 v%d, v%d, s26, -v2" % (b, b))
    a("s_nop 1")
    for g in range(G):
        b = vS + 4 * g
        a("v_exp_f32_dpp v%d, v%d %s" % (b + 1, b, dpp(3)))
    a("s_nop 0")
    a("v_add_f32 v3, v%d, v%d" % (vS + 1, vS + 5))
    for g in range(2, G):
        a("v_add_f32 v3, v3, v%d" % (vS + 4 * g + 1))
    for g in range(G):
        b = vS + 4 * g
        a("v_cvt_pk_bf16_f32 v%d, v%d, v%d" % (b + 3, b + 1, b + 1))
    a("v_mov_b32 v4, v3")
    a("s_nop 1")
    a("v_permlane32_swap_b32 v3, v4")
    a("v_add_f32 v3, v3, v4")
    a("v_mov_b32 v4, v3")
    a("s_nop 1")
    a("v_permlane16_swap_b32 v3, v4")
    a("v_add_f32 v3, v3, v4")
    for g in range(G):
        b = vS + 4 * g
        for i in range(4):
            a("v_and_b32 v%d, v%d, v%d" % (b + i, b + 3, vM + i))
    MLB = NW * 1024
    a("s_lshl_b32 s25, s23, 4")
    a("v_and_b32 v4, 8, v1")
    a("v_add_u32 v4, s25, v4")
    a("v_and_b32 v5, 0x37, v1")
    a("v_cmp_eq_u32 vcc, 3, v5")
    a("s_and_saveexec_b64 s[28:29], vcc")
    a("ds_write_b64 v4, v[2:3] offset:%d" % MLB)
    a("s_mov_b64 exec, s[28:29]")
    st(4)
    for g in range(G):
        a("s_waitcnt vmcnt(%d)" % (G - 1 - g))
        b = vS + 4 * g
        a("v_mfma_f32_16x16x32_bf16 v[%d:%d], v[%d:%d], v[%d:%d], %s" % (vA, vA + 3, b, b + 3, vV + 4 * g, vV + 4 * g + 3, "0" if g == 0 else "v[%d:%d]" % (vA, vA + 3)))
    st(5)
    a("v_lshlrev_b32 v4, 4, v0")
    a("s_nop 7")
    a("ds_write_b128 v4, v[%d:%d]" % (vA, vA + 3))
    a("s_waitcnt lgkmcnt(0)")
    a("s_barrier")
    st(6)
    a("s_cmp_lg_u32 s23, 0")
    a("s_cbranch_scc1 L_end")
    def combine(n, mlreg, oreg, extra=False):
        a("v_max_f32 v2, v%d, v%d" % (mlreg, mlreg + 2))
        i = 2
        while i < n:
            if i + 1 < n:
                a("v_max3_f32 v2, v2, v%d, v%d" % (mlreg + 2 * i, mlreg + 2 * i + 2)); i += 2
            else:
                a("v_max_f32 v2, v2, v%d" % (mlreg + 2 * i)); i += 1
        for i in range(n):
            a("v_sub_f32 v%d, v%d, v2" % (mlreg + 2 * i, mlreg + 2 * i))
        for i in range(n):
            a("v_exp_f32 v%d, v%d" % (mlreg + 2 * i, mlreg + 2 * i))
        a("s_nop 0")
        a("v_mul_f32 v3, v%d, v%d" % (mlreg, mlreg + 1))
        for i in range(1, n):
            a("v_fmac_f32 v3, v%d, v%d" % (mlreg + 2 * i, mlreg + 2 * i + 1))
        for r in range(4):
            a("v_mul_f32 v%d, v%d, v%d" % (vA + r, mlreg, oreg + r))
        for i in range(1, n):
            for r in range(4):
                a("v_fmac_f32 v%d, v%d, v%d" % (vA + r, mlreg + 2 * i, oreg + 4 * i + r))
    NMAX = max(NW, NSPLIT + 1)
    vML = 16
    vO = vML + 2 * NMAX + (2 * NMAX) % 4
    nv = max(nv, vO + 4 * NMAX)
    a("v_lshrrev_b32 v5, 5, v1")
    a("v_lshlrev_b32 v5, 3, v5")
    for w in range(NW):
        a("ds_read_b64 v[%d:%d], v5 offset:%d" % (vML + 2 * w, vML + 2 * w + 1, MLB + 16 * w))
        a("ds_read_b128 v[%d:%d], v4 offset:%d" % (vO + 4 * w, vO + 4 * w + 3, 1024 * w))
        if w % 4 == 3:
            a("s_waitcnt lgkmcnt(0)")
    a("s_waitcnt lgkmcnt(0)")
    combine(NW, vML, vO)
    st(7)
    a("s_lshl_b32 s25, s2, 11")
    a("v_add_u32 v6, s25, v4")
    a("v_add_u32 v7, s25, v5")
    a("global_store_dwordx4 v6, v[%d:%d], %s sc1" % (vA, vA + 3, WS))
    a("global_store_dwordx2 v7, v[2:3], %s offset:1024 sc1" % WS)
    a("s_waitcnt vmcnt(0)")
    st(8)
    a("s_lshl_b32 s25, s24, 2")
    a("v_mov_b32 v6, s25")
    a("v_mov_b32 v7, 1")
    a("s_mov_b64 exec, 1")
    a("global_atomic_add v7, v6, v7, %s sc0 sc1" % DBG)
    a("s_waitcnt vmcnt(0)")
    st(9)
    a("v_readfirstlane_b32 s25, v7")
    a("s_mov_b64 exec, -1")
    a("s_cmp_lg_u32 s25, %d" % (NSPLIT - 1))
    a("s_cbranch_scc1 L_end")
    a("s_load_dword s27, %s, 0" % MK)
    a("s_mul_i32 s25, s24, %d" % (NSPLIT * 2048))
    a("v_add_u32 v6, s25, v4")
    a("v_add_u32 v7, s25, v5")
    for i in range(NSPLIT):
        if i and i % 2 == 0:
            a("v_add_u32 v6, 4096, v6")
            a("v_add_u32 v7, 4096, v7")
        a("global_load_dwordx4 v[%d:%d], v6, %s offset:%d sc1" % (vO + 4 * i, vO + 4 * i + 3, WS, (i % 2) * 2048))
        a("global_load_dwordx2 v[%d:%d], v7, %s offset:%d sc1" % (vML + 2 * i, vML + 2 * i + 1, WS, (i % 2) * 2048 + 1024))
    a("v_lshrrev_b32 v2, 4, v1")
    a("v_and_b32 v3, 3, v1")
    a("v_lshlrev_b32 v2, 6, v2")
    a("v_lshl_add_u32 v2, v3, 4, v2")
    a("v_bfe_u32 v3, v1, 3, 1")
    a("v_lshl_add_u32 v3, v3, 8, v2")
    a("s_lshl_b32 s25, s24, 9")
    a("v_add_u32 v3, s25, v3")
    a("s_lshl_b32 s25, s24, 8")
    a("v_add_u32 v2, s25, v2")
    a("global_load_dwordx4 v[8:11], v3, %s" % Q)
    a("global_load_dwordx4 v[12:15], v2, %s" % KT)
    a("v_and_b32 v2, 15, v1")
    a("v_bfe_u32 v3, v1, 4, 1")
    a("v_lshlrev_b32 v3, 3, v3")
    a("v_lshl_add_u32 v2, v2, 4, v3")
    a("v_add_u32 v3, s25, v2")
    t = vO + 4 * NSPLIT
    a("global_load_dwordx2 v[%d:%d], v3, %s" % (t + 2, t + 3, VT))
    a("v_lshl_add_u32 v4, v5, 5, v2")
    a("s_lshl_b32 s25, s24, 9")
    a("v_add_u32 v4, s25, v4")
    st(10)
    a("s_waitcnt vmcnt(0) lgkmcnt(0)")
    st(11)
    d = nv; nv += 4
    a("v_mfma_f32_16x16x32_bf16 v[%d:%d], v[12:15], v[8:11], 0" % (d, d + 3))
    a("v_lshlrev_b32 v%d, 16, v%d" % (t, t + 2))
    a("v_and_b32 v%d, 0xffff0000, v%d" % (t + 1, t + 2))
    a("v_lshlrev_b32 v%d, 16, v%d" % (t + 2, t + 3))
    a("v_and_b32 v%d, 0xffff0000, v%d" % (t + 3, t + 3))
    a("s_lshl_b32 s27, s27, 16")
    a("v_sub_f32 v6, 1.0, s27")
    a("v_mul_f32 v6, 0x%08x, v6" % f2u(C_MASK))
    a("s_nop 3")
    a("v_add_f32_dpp v9, v%d, v%d %s" % (d, d + 1, dpp(0)))
    a("v_add_f32_dpp v11, v%d, v%d %s" % (d + 2, d + 3, dpp(2)))
    a("s_nop 1")
    a("v_add_f32_dpp v8, v9, v11 %s" % dpp(1))
    a("v_fma_f32 v8, v8, s26, v6")
    a("s_nop 0")
    a("v_readlane_b32 s28, v8, 3")
    a("v_readlane_b32 s29, v8, 11")
    a("v_cmp_gt_u32 vcc, 32, v1")
    a("s_nop 1")
    a("v_mov_b32 v6, s29")
    a("v_mov_b32 v7, s28")
    a("v_cndmask_b32 v%d, v6, v7, vcc" % (vML + 2 * NSPLIT))
    a("v_mov_b32 v%d, 1.0" % (vML + 2 * NSPLIT + 1))
    combine(NSPLIT + 1, vML, vO)
    a("v_rcp_f32 v3, v3")
    a("s_nop 0")
    for r in range(4):
        a("v_mul_f32 v%d, v3, v%d" % (vA + r, vA + r))
    a("v_cvt_pk_bf16_f32 v12, v12, v13")
    a("v_cvt_pk_bf16_f32 v13, v14, v15")
    st(12)
    a("global_store_dwordx2 v4, v[12:13], %s" % OUT)
    a("L_end:")
    if ST == "st": st.dump("s23", NW, WS)
    elif ST: st.encode(int(ST))
    a("L_exit:")
    a("s_endpgm")
    return wrap(a.text(), NWG, NW * 64, NW * 1024 + NW * 16, nv)

if __name__ == "__main__":
    NW = int(sys.argv[1]); G = int(sys.argv[2]); NT = sys.argv[3] if len(sys.argv) > 3 else "nt"
    if NT == "-": NT = ""
    sys.stdout.write(gen(NW, G, NT, sys.argv[4] if len(sys.argv) > 4 else False))
```

```python
import sys
from common import *

def gen(ST=False, pol="nt", hl=2, fast=1, gbits=(3,4,5,6), wbits=(0,1,2), sbits=(7,8,9,10), enc_k=10, pre=1,
        prio=1, vpre=0, outpol="", stamps=None, xsel=None):
    NW, G, NWG = 8, 16, 256
    a = Asm()
    st0 = Stamps(a, ST, base=64)
    def st(i):
        if stamps is None or i in stamps: st0(i)
    QS, KS, VS = "s[4:5]", "s[6:7]", "s[8:9]"
    KT, VT, MK, OUT, DBG, WS = "s[10:11]", "s[12:13]", "s[14:15]", "s[16:17]", "s[18:19]", "s[20:21]"
    sG = 32
    sW, sH, sSP, sC, sIN, sFL, sTR, sT0, sT1 = "s28", "s29", "s30", "s31", "s48", "s49", "s50", "s51", "s52"
    sMK, sRT = "s53", "s61"
    vKo, vVo, vQo0, vQo1 = 2, 3, 4, 5
    vM = 8
    vA = 12
    vQ0, vQ1 = 16, 20
    vLw, vLr, vMLw, vMLr, vMr = 24, 25, 26, 27, 28
    vSt, vHd = 29, 30
    vF = 31
    vT = 32
    vKT = 40
    vVT = 44
    vCb, vCh, vOo = 45, 46, 47
    vS = 48
    vK = 80
    vV = 144
    nv = 208
    dpp = lambda p: "quad_perm:[%d,%d,%d,%d] row_mask:0xf bank_mask:0xf" % (p, p, p, p)
    full = "row_mask:0xf bank_mask:0xf"
    def retry(lbl):
        a("s_sub_u32 s60, s60, 1")
        a("s_cbranch_scc0 %s" % lbl)
        a("s_mov_b32 s60, 0")
    LSLOT = 1152
    LML = NW * LSLOT
    LROLE = LML + 64 + 128
    LDS = LROLE + 64
    HDR = 0x80000

    a("s_load_dwordx16 s[4:19], s[0:1], 0")
    a("s_load_dwordx2 s[20:21], s[0:1], 64")
    st0.init()
    a("s_cmp_ge_u32 s2, %d" % NWG)
    a("s_cbranch_scc1 L_exit")
    a("v_lshrrev_b32 v2, 6, v0")
    a("v_and_b32 v1, 63, v0")
    if hl == 2:
        a("s_and_b32 %s, s2, 7" % sH); a("s_lshl_b32 %s, %s, 1" % (sH, sH)); a("s_lshr_b32 %s, s2, 7" % sT0); a("s_or_b32 %s, %s, %s" % (sH, sH, sT0))
        a("s_bfe_u32 %s, s2, 0x40003" % sSP)
    elif hl == 1:
        a("s_and_b32 %s, s2, 15" % sH); a("s_lshr_b32 %s, s2, 4" % sSP)
    else:
        a("s_lshr_b32 %s, s2, 4" % sH); a("s_and_b32 %s, s2, 15" % sSP)
    a("v_readfirstlane_b32 %s, v2" % sW)
    for i in range(8): a("v_mov_b32 v%d, 0" % (vQ0 + i))
    a("s_mov_b32 s22, 0x0f0f0f0f"); a("s_mov_b32 s23, s22")
    def scatter(dst, src, bits):
        i = 0
        while i < len(bits):
            j = i
            while j + 1 < len(bits) and bits[j + 1] == bits[j] + 1: j += 1
            n = j - i + 1
            if i == 0 and n == len(bits):
                a("s_lshl_b32 %s, %s, %d" % (sT1, src, bits[i] + 10))
            else:
                a("s_bfe_u32 %s, %s, 0x%x" % (sT1, src, (n << 16) | i))
                a("s_lshl_b32 %s, %s, %d" % (sT1, sT1, bits[i] + 10))
            a("s_or_b32 %s, %s, %s" % (dst, dst, sT1))
            i = j + 1
    a("s_lshl_b32 %s, %s, 21" % (sT0, sH))
    scatter(sT0, sSP, sbits)
    scatter(sT0, sW, wbits)
    goff = [sum(((g >> i) & 1) << (b + 10) for i, b in enumerate(gbits)) for g in range(G)]
    steps = sorted(set((goff[g + 1] - goff[g]) & 0xffffffff for g in range(G - 1)))
    sreg = {}
    for i, x in enumerate(steps):
        sreg[x] = "s%d" % (sG + i)
        a("s_mov_b32 %s, 0x%x" % (sreg[x], x))
    a("v_lshrrev_b32 v6, 4, v1")
    a("v_and_b32 v7, 3, v1")
    a("v_lshlrev_b32 v6, 6, v6")
    a("v_lshl_add_u32 v6, v7, 4, v6")
    a("v_bfe_u32 v7, v1, 2, 2")
    a("v_lshl_add_u32 v%d, v7, 8, v6" % vKo)
    a("v_add_u32 v%d, %s, v%d" % (vKo, sT0, vKo))
    a("v_lshl_add_u32 v%d, v1, 4, %s" % (vVo, sT0))
    a("v_bfe_u32 v7, v1, 3, 1")
    a("v_lshl_add_u32 v7, v7, 8, v6")
    a("s_lshl_b32 %s, %s, 9" % (sT1, sH))
    a("v_add_u32 v%d, %s, v7" % (vQo0, sT1))
    a("v_and_b32 v8, 7, v1")
    a("v_lshrrev_b32 v11, 3, v1")
    a("s_lshl_b32 s55, %s, 14" % sH)
    a("s_lshl_b32 %s, %s, 7" % (sT1, sSP))
    a("s_add_u32 s54, s55, %s" % sT1)
    a("s_lshl_b32 s58, %s, 12" % sH)
    a("s_add_u32 s58, s58, 0x%x" % HDR)
    a("s_add_u32 s57, s58, %s" % sT1)
    if prio: a("s_setprio %d" % prio)
    a("s_cmp_lg_u32 %s, 7" % sW)
    a("s_cbranch_scc1 L_nomark")
    a("s_setprio 3")
    a("v_lshlrev_b32 v14, 4, v8")
    a("v_lshl_add_u32 v12, v11, 11, v14")
    a("v_add_u32 v12, s54, v12")
    a("v_and_b32 v13, 1, v11")
    a("v_lshl_add_u32 v13, v13, 11, v14")
    a("v_add_u32 v13, s57, v13")
    for i in range(4): a("v_mov_b32 v%d, -1" % (vT + i))
    a("s_getreg_b32 %s, hwreg(HW_REG_XCC_ID, 0, 4)" % sIN)
    a("s_mul_i32 %s, %s, %s" % (sT0, sIN, sIN))
    a("s_lshl_b32 %s, %s, 8" % (sT0, sT0))
    a("s_add_u32 %s, %s, %s" % (sIN, sIN, sT0))
    a("s_lshl_b32 %s, %s, 8" % (sIN, sIN))
    a("s_add_u32 %s, %s, 1" % (sIN, sIN))
    a("s_mov_b32 %s, %s" % (sRT, sIN))
    a("s_lshl_b32 s62, %s, 4" % sH)
    a("s_waitcnt lgkmcnt(0)")
    a("global_store_dwordx4 v12, v[%d:%d], %s sc1" % (vT, vT + 3, WS))
    a("global_store_dwordx4 v13, v[%d:%d], %s sc1" % (vT, vT + 3, WS))
    a("s_waitcnt vmcnt(0)")
    a("s_atomic_add %s, %s, s62 glc" % (sRT, DBG))
    if pre:
        a("global_load_dwordx4 v[%d:%d], v12, %s sc1" % (vT, vT + 3, WS))
        a("global_load_dwordx4 v[%d:%d], v13, %s sc1" % (vT + 4, vT + 7, WS))
    a("s_setprio %d" % prio)
    a("s_branch L_go")
    a("L_nomark:")
    a("s_waitcnt lgkmcnt(0)")
    a("L_go:")
    st(1)
    def ld(dst, vo, base, g):
        a("global_load_dwordx4 v[%d:%d], v%d, %s %s" % (dst + 4 * g, dst + 4 * g + 3, vo, base, pol))
        if g + 1 < G: a("v_add_u32 v%d, %s, v%d" % (vo, sreg[(goff[g + 1] - goff[g]) & 0xffffffff], vo))
    ldK = lambda g: ld(vK, vKo, KS, g)
    ldV = lambda g: ld(vV, vVo, VS, g)
    a("s_mov_b64 exec, s[22:23]")
    a("global_load_dwordx4 v[%d:%d], v%d, %s" % (vQ0, vQ0 + 3, vQo0, QS))
    a("s_not_b64 exec, exec")
    a("global_load_dwordx4 v[%d:%d], v%d, %s" % (vQ1, vQ1 + 3, vQo0, QS))
    a("s_mov_b64 exec, -1")
    for g in range(G): ldK(g)
    if prio: a("s_setprio 0")
    for g in range(vpre): ldV(g)
    st(2)
    a("v_lshrrev_b32 v9, 5, v1")
    a("v_bfe_u32 v10, v1, 4, 1")
    a("v_lshl_add_u32 v9, v9, 1, v10")
    a("v_lshl_add_u32 v9, v8, 2, v9")
    a("s_lshl_b32 %s, %s, 11" % (sT1, sW))
    a("s_add_u32 s55, s55, %s" % sT1)
    a("s_add_u32 %s, s54, %s" % (sT1, sT1))
    a("v_lshl_add_u32 v%d, v9, 2, %s" % (vSt, sT1))
    a("v_lshl_add_u32 v%d, v1, 4, s55" % vCb)
    a("s_and_b32 s56, %s, 1" % sW)
    a("s_lshl_b32 %s, s56, 11" % sT1)
    a("s_add_u32 s58, s58, %s" % sT1)
    a("s_add_u32 %s, s57, %s" % (sT1, sT1))
    a("v_and_b32 v10, 15, v1")
    a("v_lshl_add_u32 v%d, v10, 3, %s" % (vHd, sT1))
    a("v_lshl_add_u32 v%d, v11, 7, s58" % vCh)
    a("s_lshr_b32 s59, %s, 1" % sW)
    a("s_lshl_b32 %s, s59, 6" % sT0)
    a("s_lshl_b32 %s, %s, 8" % (sT1, sH))
    a("v_add_u32 v6, %s, v6" % sT1)
    a("s_add_u32 %s, %s, %s" % (sT0, sT0, sT1))
    a("v_lshl_add_u32 v7, v9, 1, %s" % sT0)
    a("s_lshl_b32 %s, s56, 8" % sT0)
    a("s_add_u32 %s, %s, %s" % (sT1, sT1, sT0))
    a("v_add_u32 v%d, %s, v7" % (vOo, sT1))
    a("v_lshrrev_b32 v12, 5, v1")
    a("v_lshlrev_b32 v12, 5, v12")
    a("v_lshl_add_u32 v12, v10, 1, v12")
    a("v_bfe_u32 v13, v1, 4, 1")
    a("v_add_u32 v12, v12, v13")
    a("s_mul_i32 %s, %s, %d" % (sT0, sW, LSLOT))
    a("v_lshl_add_u32 v%d, v12, 4, %s" % (vLw, sT0))
    a("s_lshl_b32 %s, s56, 9" % sT0)
    a("s_lshl_b32 %s, s59, 7" % sT1)
    a("s_add_u32 %s, %s, %s" % (sT0, sT0, sT1))
    a("v_mul_u32_u24 v12, %d, v11" % LSLOT)
    a("v_lshl_add_u32 v12, v8, 4, v12")
    a("v_add_u32 v%d, %s, v12" % (vLr, sT0))
    a("v_and_b32 v12, 8, v1")
    a("v_add_u32 v%d, %s, v12" % (vMLw, sW))
    a("s_lshl_b32 %s, s56, 6" % sT0)
    a("v_lshl_add_u32 v%d, v11, 3, %s" % (vMLr, sT0))
    a("s_lshl_b32 %s, s56, 5" % sT0)
    a("v_mov_b32 v%d, %s" % (vMr, sT0))
    a("s_mov_b32 %s, 0x%08x" % (sC, f2u(C_QK)))
    a("s_mov_b32 s60, 0x20000")
    a("s_mov_b32 %s, 0xff7fffff" % sTR)
    a("v_mov_b32 v%d, 0" % vVT)
    a("v_and_b32 v12, 1, v1")
    a("v_lshlrev_b32 v12, 4, v12")
    a("v_mov_b32 v13, 0xffff")
    a("v_lshlrev_b32 v12, v12, v13")
    a("v_bfe_u32 v13, v1, 1, 2")
    for i in range(4):
        a("v_cmp_eq_u32 vcc, %d, v13" % i)
        a("s_nop 1")
        a("v_cndmask_b32 v%d, 0, v12, vcc" % (vM + i))
    for g in range(G):
        d = vS + 4 * (g // 2)
        a("s_waitcnt vmcnt(%d)" % (G - 1 - g + vpre))
        a("v_mfma_f32_16x16x32_bf16 v[%d:%d], v[%d:%d], v[%d:%d], %s" % (d, d + 3, vK + 4 * g, vK + 4 * g + 3,
            (vQ0, vQ1)[g & 1], (vQ0, vQ1)[g & 1] + 3, "0" if g % 2 == 0 else "v[%d:%d]" % (d, d + 3)))
    st(3)
    a("s_cmp_lg_u32 %s, 0" % sSP)
    a("s_cbranch_scc1 L_notree")
    a("global_load_dwordx4 v[%d:%d], v6, %s" % (vKT, vKT + 3, KT))
    a("global_load_ushort v%d, v7, %s" % (vVT, VT))
    a("s_load_dword %s, %s, 0" % (sMK, MK))
    a("L_notree:")
    P = G // 2
    for p in range(P):
        b = vS + 4 * p
        a("v_add_f32_dpp v%d, v%d, v%d %s" % (b + 1, b, b + 1, dpp(0)))
        a("v_add_f32_dpp v%d, v%d, v%d %s" % (b + 3, b + 2, b + 3, dpp(2)))
    for p in range(P):
        b = vS + 4 * p
        a("v_add_f32_dpp v%d, v%d, v%d %s" % (b, b + 1, b + 3, dpp(1)))
    t0, t1, t2 = vT, vT + 1, vT + 2
    a("v_max3_f32 v%d, v%d, v%d, v%d" % (t0, vS, vS + 4, vS + 8))
    a("v_max3_f32 v%d, v%d, v%d, v%d" % (t1, vS + 12, vS + 16, vS + 20))
    a("v_max3_f32 v%d, v%d, v%d, v%d" % (t0, t0, vS + 24, vS + 28))
    a("v_max_f32 v%d, v%d, v%d" % (t0, t0, t1))
    a("v_mov_b32 v%d, v%d" % (t1, t0))
    a("s_nop 1")
    a("v_permlane32_swap_b32 v%d, v%d" % (t0, t1))
    a("v_max_f32 v%d, v%d, v%d" % (t0, t0, t1))
    a("v_mov_b32 v%d, v%d" % (t1, t0))
    a("s_nop 1")
    a("v_permlane16_swap_b32 v%d, v%d" % (t0, t1))
    a("v_max_f32 v%d, v%d, v%d" % (t0, t0, t1))
    a("s_nop 1")
    a("v_mov_b32_dpp v%d, v%d %s" % (t1, t0, dpp(3)))
    a("s_nop 1")
    a("v_max_f32_dpp v%d, v%d, v%d row_half_mirror %s" % (t0, t1, t1, full))
    a("v_mul_f32 v%d, %s, v%d" % (t0, sC, t0))
    for p in range(P):
        b = vS + 4 * p
        a("v_fma_f32 v%d, v%d, %s, -v%d" % (b, b, sC, t0))
    for p in range(P):
        b = vS + 4 * p
        a("v_exp_f32_dpp v%d, v%d %s" % (b + 1, b, dpp(3)))
    a("v_add_f32 v%d, v%d, v%d" % (t1, vS + 1, vS + 5))
    for p in range(2, P):
        a("v_add_f32 v%d, v%d, v%d" % (t1, t1, vS + 4 * p + 1))
    cv = lambda p: a("v_cvt_pk_bf16_f32 v%d, v%d, v%d" % (vS + 4 * p + 2, vS + 4 * p + 1, vS + 4 * p + 1))
    a("v_mov_b32 v%d, v%d" % (t2, t1))
    cv(0); cv(1)
    a("v_permlane32_swap_b32 v%d, v%d" % (t1, t2))
    a("v_add_f32 v%d, v%d, v%d" % (t1, t1, t2))
    a("v_mov_b32 v%d, v%d" % (t2, t1))
    cv(2); cv(3)
    a("v_permlane16_swap_b32 v%d, v%d" % (t1, t2))
    a("v_add_f32 v%d, v%d, v%d" % (t2, t1, t2))
    cv(4); cv(5)
    a("v_add_f32_dpp v%d, v%d, v%d row_half_mirror %s" % (t1, t2, t2, full))
    a("v_lshlrev_b32 v6, 2, v%d" % vMLw)
    a("v_lshlrev_b32 v7, 3, v%d" % vMLw)
    a("ds_write_b32 v6, v%d offset:%d" % (t0, LML))
    a("ds_write_b64 v7, v[%d:%d] offset:%d" % (t0, t1, LML + 64))
    cv(6); cv(7)
    def ands(g):
        src = vS + 4 * (g // 2) + 2
        for i in range(4):
            own = (i >> 1) == (g & 1)
            if own: a("v_and_b32 v%d, v%d, v%d" % (vK + 4 * g + i, src, vM + i))
            else:   a("v_and_b32_dpp v%d, v%d, v%d row_half_mirror %s" % (vK + 4 * g + i, src, vM + i, full))
    for g in range(G): ands(g)
    a("s_cmp_lg_u32 %s, 7" % sW)
    a("s_cbranch_scc1 L_norole")
    a("s_waitcnt lgkmcnt(0)")
    a("s_and_b32 %s, %s, 0xff" % (sT0, sRT))
    a("s_mul_i32 %s, %s, %s" % (sT1, sT0, sIN))
    a("s_cmp_eq_u32 %s, %s" % (sT1, sRT))
    a("s_cselect_b32 %s, %d, 0" % (sFL, 1 if fast else 0))
    a("s_cmp_lg_u32 %s, 0" % sT0)
    a("s_cbranch_scc1 L_post")
    a("s_or_b32 %s, %s, 2" % (sFL, sFL))
    a("L_cnt:")
    a("s_load_dword %s, %s, s62 glc" % (sRT, DBG))
    a("s_waitcnt lgkmcnt(0)")
    a("s_and_b32 %s, %s, 0xff" % (sT0, sRT))
    a("s_cmp_eq_u32 %s, 16" % sT0)
    a("s_cbranch_scc1 L_post")
    a("s_sleep 8")
    retry("L_cnt")
    a("L_post:")
    a("v_mov_b32 v6, %s" % sFL)
    a("v_mov_b32 v7, 0")
    a("ds_write_b32 v7, v6 offset:%d" % LROLE)
    a("L_norole:")
    st(4)
    for g in range(vpre, G): ldV(g)
    st(12)
    a("s_cmp_lg_u32 %s, 0" % sSP)
    a("s_waitcnt lgkmcnt(0)")
    a("s_cbranch_scc1 L_nc1")
    a("s_waitcnt vmcnt(%d)" % (G - vpre))
    a("v_mfma_f32_16x16x32_bf16 v[%d:%d], v[%d:%d], v[%d:%d], 0" % (vT + 4, vT + 7, vKT, vKT + 3, vQ0, vQ0 + 3))
    a("s_lshl_b32 %s, %s, 16" % (sMK, sMK))
    a("v_sub_f32 v6, 1.0, %s" % sMK)
    a("v_mul_f32 v6, 0x%08x, v6" % f2u(C_MASK))
    a("v_lshlrev_b32 v%d, 16, v%d" % (vVT, vVT))
    a("s_lshl_b32 %s, s56, 3" % sT0)
    a("s_add_u32 %s, %s, 3" % (sT0, sT0))
    a("s_nop 2")
    a("v_add_f32_dpp v%d, v%d, v%d %s" % (vT + 5, vT + 4, vT + 5, dpp(0)))
    a("v_add_f32_dpp v%d, v%d, v%d %s" % (vT + 7, vT + 6, vT + 7, dpp(2)))
    a("s_nop 0")
    a("v_add_f32_dpp v%d, v%d, v%d %s" % (vT + 4, vT + 5, vT + 7, dpp(1)))
    a("v_fma_f32 v%d, v%d, %s, v6" % (vT + 4, vT + 4, sC))
    a("s_nop 0")
    a("v_readlane_b32 %s, v%d, %s" % (sTR, vT + 4, sT0))
    a("L_nc1:")
    a("s_barrier")
    a("v_mov_b32 v9, 0")
    a("ds_read_b128 v[%d:%d], v%d offset:%d" % (vT, vT + 3, vMr, LML))
    a("ds_read_b128 v[%d:%d], v%d offset:%d" % (vT + 4, vT + 7, vMr, LML + 16))
    a("ds_read_b64 v[6:7], v%d offset:%d" % (vMLr, LML + 64))
    a("ds_read_b32 v9, v9 offset:%d" % LROLE)
    a("s_waitcnt lgkmcnt(0)")
    a("v_max3_f32 v%d, v%d, v%d, v%d" % (vT, vT, vT + 1, vT + 2))
    a("v_max3_f32 v%d, v%d, v%d, v%d" % (vT + 3, vT + 3, vT + 4, vT + 5))
    a("v_max3_f32 v%d, v%d, v%d, v%d" % (vT, vT, vT + 6, vT + 7))
    a("v_max3_f32 v%d, v%d, v%d, %s" % (vT, vT, vT + 3, sTR))
    a("v_sub_f32 v6, v6, v%d" % vT)
    a("v_sub_f32 v8, %s, v%d" % (sTR, vT))
    a("v_exp_f32 v%d, v6" % vF)
    a("v_exp_f32 v8, v8")
    a("v_readfirstlane_b32 %s, v9" % sFL)
    a("v_mul_f32 v6, v%d, v7" % vF)
    a("v_mov_b32 v7, v6")
    a("v_min_u32 v%d, -2, v%d" % (vT, vT))
    a("v_mul_f32 v%d, v8, v%d" % (vVT, vVT))
    a("v_permlane32_swap_b32 v6, v7")
    a("v_add_f32 v6, v6, v7")
    a("v_mov_b32 v7, v6")
    a("s_nop 1")
    a("v_permlane16_swap_b32 v6, v7")
    a("v_add_f32 v6, v6, v7")
    a("s_bitcmp1_b32 %s, 0" % sFL)
    a("s_nop 0")
    a("v_add_f32_dpp v%d, v6, v6 row_ror:8 %s" % (vT + 1, full))
    a("v_add_f32 v%d, v%d, v8" % (vT + 1, vT + 1))
    a("v_min_u32 v%d, -2, v%d" % (vT + 1, vT + 1))
    a("s_cbranch_scc1 L_hf")
    a("global_store_dwordx2 v%d, v[%d:%d], %s sc1" % (vHd, vT, vT + 1, WS))
    a("s_branch L_hd")
    a("L_hf:")
    a("global_store_dwordx2 v%d, v[%d:%d], %s" % (vHd, vT, vT + 1, WS))
    a("L_hd:")
    a("s_bitcmp1_b32 %s, 1" % sFL)
    for g in range(G):
        a("s_waitcnt vmcnt(%d)" % (G - g))
        a("v_mfma_f32_16x16x32_bf16 v[%d:%d], v[%d:%d], v[%d:%d], %s" % (vA, vA + 3, vK + 4 * g, vK + 4 * g + 3, vV + 4 * g, vV + 4 * g + 3, "0" if g == 0 else "v[%d:%d]" % (vA, vA + 3)))
    st(5)
    vH0 = vS
    vB = vS + 4
    a("s_cbranch_scc0 L_nc2")
    a("global_load_dwordx2 v[%d:%d], v%d, %s sc1" % (vH0, vH0 + 1, vCh, WS))
    a("global_load_dwordx2 v[%d:%d], v%d, %s offset:1024 sc1" % (vH0 + 2, vH0 + 3, vCh, WS))
    a("L_nc2:")
    a("s_nop 5")
    a("s_bitcmp1_b32 %s, 0" % sFL)
    a("ds_write_b128 v%d, v[%d:%d]" % (vLw, vA, vA + 3))
    a("s_waitcnt lgkmcnt(0)")
    a("s_barrier")
    st(6)
    a("ds_read_b128 v[%d:%d], v%d" % (vA, vA + 3, vLr))
    a("s_waitcnt lgkmcnt(0)")
    def treduce():
        a("v_permlane32_swap_b32 v%d, v%d" % (vA, vA + 2))
        a("v_permlane32_swap_b32 v%d, v%d" % (vA + 1, vA + 3))
        a("v_add_f32 v%d, v%d, v%d" % (vA, vA, vA + 2))
        a("v_add_f32 v%d, v%d, v%d" % (vA + 1, vA + 1, vA + 3))
        a("s_nop 1")
        a("v_permlane16_swap_b32 v%d, v%d" % (vA, vA + 1))
        a("v_add_f32 v%d, v%d, v%d" % (vA, vA, vA + 1))
        a("s_nop 1")
        a("v_add_f32_dpp v%d, v%d, v%d row_ror:8 %s" % (vA, vA, vA, full))
    for r in (0, 2, 1, 3):
        a("v_mul_f32 v%d, v%d, v%d" % (vA + r, vF, vA + r))
    a("s_nop 0")
    treduce()
    a("v_add_f32 v%d, v%d, v%d" % (vA, vA, vVT))
    a("v_min_u32 v%d, -2, v%d" % (vA, vA))
    a("s_cbranch_scc0 L_bs")
    a("global_store_dword v%d, v%d, %s" % (vSt, vA, WS))
    a("L_bd:")
    st(7)
    a("s_bitcmp1_b32 %s, 1" % sFL)
    a("s_cbranch_scc0 L_end")
    a("global_load_dwordx4 v[%d:%d], v%d, %s sc1" % (vB, vB + 3, vCb, WS))
    a("global_load_dwordx4 v[%d:%d], v%d, %s offset:1024 sc1" % (vB + 4, vB + 7, vCb, WS))
    a("s_waitcnt vmcnt(3)")
    a("L_hp:")
    a("v_max3_u32 v6, v%d, v%d, v%d" % (vH0, vH0 + 1, vH0 + 2))
    a("v_max_u32 v6, v6, v%d" % (vH0 + 3))
    a("v_cmp_eq_u32 vcc, -1, v6")
    a("s_cbranch_vccz L_hok")
    a("global_load_dwordx2 v[%d:%d], v%d, %s sc1" % (vH0, vH0 + 1, vCh, WS))
    a("global_load_dwordx2 v[%d:%d], v%d, %s offset:1024 sc1" % (vH0 + 2, vH0 + 3, vCh, WS))
    a("s_waitcnt vmcnt(0)")
    retry("L_hp")
    a("L_hok:")
    st(8)
    a("v_max_f32 v6, v%d, v%d" % (vH0, vH0 + 2))
    a("v_mov_b32 v7, v6")
    a("s_nop 1")
    a("v_permlane32_swap_b32 v6, v7")
    a("v_max_f32 v6, v6, v7")
    a("v_mov_b32 v7, v6")
    a("s_nop 1")
    a("v_permlane16_swap_b32 v6, v7")
    a("v_max_f32 v6, v6, v7")
    a("s_nop 1")
    a("v_max_f32_dpp v6, v6, v6 row_ror:8 %s" % full)
    a("v_sub_f32 v%d, v%d, v6" % (vH0, vH0))
    a("v_sub_f32 v%d, v%d, v6" % (vH0 + 2, vH0 + 2))
    a("v_exp_f32 v%d, v%d" % (vH0, vH0))
    a("v_exp_f32 v%d, v%d" % (vH0 + 2, vH0 + 2))
    a("v_mul_f32 v6, v%d, v%d" % (vH0, vH0 + 1))
    a("v_fmac_f32 v6, v%d, v%d" % (vH0 + 2, vH0 + 3))
    a("v_mov_b32 v7, v6")
    a("s_nop 1")
    a("v_permlane32_swap_b32 v6, v7")
    a("v_add_f32 v6, v6, v7")
    a("v_mov_b32 v7, v6")
    a("s_nop 1")
    a("v_permlane16_swap_b32 v6, v7")
    a("v_add_f32 v6, v6, v7")
    a("s_nop 1")
    a("v_add_f32_dpp v6, v6, v6 row_ror:8 %s" % full)
    a("v_rcp_f32 v6, v6")
    a("s_nop 0")
    a("v_mul_f32 v%d, v%d, v6" % (vH0, vH0))
    a("v_mul_f32 v%d, v%d, v6" % (vH0 + 2, vH0 + 2))
    st(9)
    a("L_bp:")
    a("s_waitcnt vmcnt(0)")
    a("v_max3_u32 v6, v%d, v%d, v%d" % (vB, vB + 1, vB + 2))
    a("v_max3_u32 v7, v%d, v%d, v%d" % (vB + 3, vB + 4, vB + 5))
    a("v_max3_u32 v6, v6, v%d, v%d" % (vB + 6, vB + 7))
    a("v_max_u32 v6, v6, v7")
    a("v_cmp_eq_u32 vcc, -1, v6")
    a("s_cbranch_vccz L_bok")
    a("global_load_dwordx4 v[%d:%d], v%d, %s sc1" % (vB, vB + 3, vCb, WS))
    a("global_load_dwordx4 v[%d:%d], v%d, %s offset:1024 sc1" % (vB + 4, vB + 7, vCb, WS))
    retry("L_bp")
    a("s_waitcnt vmcnt(0)")
    a("L_bok:")
    st(10)
    for r in (0, 2, 1, 3):
        a("v_mul_f32 v%d, v%d, v%d" % (vA + r, vH0, vB + r))
    for r in (0, 2, 1, 3):
        a("v_fmac_f32 v%d, v%d, v%d" % (vA + r, vH0 + 2, vB + 4 + r))
    a("s_nop 0")
    treduce()
    a("v_cvt_pk_bf16_f32 v%d, v%d, v%d" % (vA, vA, vA))
    st(11)
    a("global_store_short v%d, v%d, %s %s" % (vOo, vA, OUT, outpol))
    a("L_end:")
    if ST == "st": st0.dump(sW, NW, WS)
    elif ST:
        if xsel is not None:
            a("s_and_b32 s44, s2, 7"); a("s_cmp_lg_u32 s44, %d" % xsel); a("s_cbranch_scc1 L_exit")
        st0.encode(int(ST), k=enc_k)
    a("L_exit:")
    a("s_endpgm")
    a("L_bs:")
    a("global_store_dword v%d, v%d, %s sc1" % (vSt, vA, WS))
    a("s_branch L_bd")
    return wrap(a.text(), NWG, NW * 64, LDS, nv, nsgpr=96)

if __name__ == "__main__":
    kw = {}
    for x in sys.argv[1:]:
        k, v = x.split("=")
        try: v = eval(v)
        except: pass
        kw[k] = v
    if "ST" in kw and kw["ST"] != "st": kw["ST"] = str(kw["ST"])
    sys.stdout.write(gen(**kw))
```

```python
import sys
from common import *

def gen(ST=False, pol="nt", D=4, BA=23, B0=11, fast=1, touch=1, winx=(0, 0, 0, 0), outpol="", stamps=None, enc_k=10,
        D0=None, qpos=None, BL=4, tries=4, slowsel=None, hprio=3, mpol='', prep=2, ppol='sc1', bpol=''):
    NW, G, NWG = 8, 16, 256
    D0 = D0 or D
    qpos = D0 if qpos is None else qpos
    a = Asm()
    st0 = Stamps(a, ST, base=64)
    def st(i):
        if stamps is None or i in stamps: st0(i)
    QS, KS, VS, KT = "s[4:5]", "s[6:7]", "s[8:9]", "s[10:11]"
    VT, MK, OUT, DBG, WS = "s[12:13]", "s[14:15]", "s[16:17]", "s[18:19]", "s[20:21]"
    sW, sH, sSP, sC, sIN, sFL, sT0, sT1, sCH = "s28", "s29", "s30", "s31", "s32", "s33", "s34", "s35", "s36"
    sMK, sRT, sRY, sHW, sDB, sCO = "s37", "s38", "s39", "s40", "s41", "s42"
    vKo, vVo = 2, 3
    vLw, vLr, vRec, vMLw, vSt, vCb, vOo, vTv = 4, 5, 6, 7, 8, 9, 10, 11
    vM = 12
    vA = 16
    vQ0, vQ1 = 20, 24
    vT = 28
    vP = 36
    vS = 44
    vD = 76
    nv = 140
    dpp = lambda p: "quad_perm:[%d,%d,%d,%d] row_mask:0xf bank_mask:0xf" % (p, p, p, p)
    full = "row_mask:0xf bank_mask:0xf"
    def retry(lbl):
        a("s_sub_u32 %s, %s, 1" % (sRY, sRY))
        a("s_cbranch_scc0 %s" % lbl)
        a("s_mov_b32 %s, 0" % sRY)
    LSLOT = 1152
    LML = NW * LSLOT
    LREC = LML + 128
    LTV = LREC + 256
    LROLE = LTV + 1024
    LDS = LROLE + 16
    HDR = 16384
    SLOW = 0x100000

    a("s_load_dwordx8 s[4:11], s[0:1], 0")
    st0.init()
    a("s_cmp_ge_u32 s2, %d" % NWG)
    a("s_cbranch_scc1 L_exit")
    a("v_lshrrev_b32 v4, 6, v0")
    a("v_and_b32 v2, 3, v0")
    a("s_and_b32 %s, s2, 7" % sT0)
    a("v_readfirstlane_b32 %s, v4" % sW)
    a("s_lshr_b32 %s, s2, 3" % sT1)
    a("s_lshl_b32 %s, %s, 5" % (sT0, sT0))
    a("s_or_b32 %s, %s, %s" % (sCH, sT0, sT1))
    a("s_lshl_b32 %s, %s, 17" % (sT0, sCH))
    a("v_bfe_u32 v5, v0, 4, 2")
    a("v_lshlrev_b32 v2, 4, v2")
    a("v_lshl_or_b32 v5, v5, 6, v2")
    a("v_bfe_u32 v6, v0, 2, 2")
    a("v_lshl_or_b32 v3, v4, 12, %s" % sT0)
    a("v_lshl_or_b32 v2, v6, 8, v5")
    a("s_cmp_eq_u32 %s, 8" % sW)
    a("v_or_b32 v%d, v2, v3" % vKo)
    a("s_cbranch_scc1 L_helper")
    a("s_waitcnt lgkmcnt(0)")
    st(1)
    woff = [(j << 15) ^ winx[j] for j in range(4)]
    ops = []
    def issue(i):
        g = i % G
        vo, base = (vKo, KS) if i < G else (vVo, VS)
        if g % 4 == 0 and g:
            a("v_xor_b32 v%d, 0x%x, v%d" % (vo, woff[g // 4] ^ woff[g // 4 - 1], vo))
        a("global_load_dwordx4 v[%d:%d], v%d, %s offset:%d %s" % (vD + 4 * g, vD + 4 * g + 3, vo, base, (g % 4) * 1024, pol))
        ops.append(i)
    def wait_for(x):
        n = len(ops) - 1 - ops.index(x)
        a("s_waitcnt vmcnt(%d)" % n)
    def qloads():
        a("s_load_dwordx8 s[12:19], s[0:1], 32")
        a("s_load_dwordx2 s[20:21], s[0:1], 64")
        a("s_lshr_b32 %s, %s, 4" % (sH, sCH))
        a("v_bfe_u32 v6, v0, 3, 1")
        a("v_lshl_or_b32 v6, v6, 8, v5")
        a("s_lshl_b32 %s, %s, 9" % (sT1, sH))
        a("v_or_b32 v6, %s, v6" % sT1)
        for i in range(8): a("v_mov_b32 v%d, 0" % (vQ0 + i))
        a("s_mov_b32 s22, 0x0f0f0f0f"); a("s_mov_b32 s23, s22")
        a("s_mov_b64 exec, s[22:23]")
        a("global_load_dwordx4 v[%d:%d], v6, %s" % (vQ0, vQ0 + 3, QS))
        a("s_not_b64 exec, exec")
        a("global_load_dwordx4 v[%d:%d], v6, %s" % (vQ1, vQ1 + 3, QS))
        a("s_mov_b64 exec, -1")
        ops.extend(["Q0", "Q1"])
    def consts():
        t = vT
        a("v_and_b32 v1, 63, v0")
        a("v_lshl_or_b32 v%d, v1, 4, v3" % vVo)
        a("s_and_b32 %s, %s, 15" % (sSP, sCH))
        a("s_and_b32 %s, %s, 1" % (sHW, sW))
        a("s_lshr_b32 %s, %s, 1" % (sDB, sW))
        a("v_and_b32 v%d, 7, v1" % t)
        a("v_lshrrev_b32 v%d, 3, v1" % (t + 1))
        a("v_lshrrev_b32 v%d, 5, v1" % (t + 2))
        a("v_bfe_u32 v%d, v1, 4, 1" % (t + 3))
        a("v_and_b32 v%d, 15, v1" % (t + 4))
        a("v_lshl_add_u32 v%d, v%d, 1, v%d" % (t + 5, t + 2, t + 3))
        a("v_lshl_add_u32 v%d, v%d, 2, v%d" % (t + 5, t, t + 5))
        a("s_lshl_b32 %s, %s, 15" % (sT0, sH))
        a("s_lshl_b32 %s, %s, 11" % (sT1, sW))
        a("s_add_u32 %s, %s, %s" % (sT0, sT0, sT1))
        a("v_lshl_add_u32 v%d, v1, 4, %s" % (vCb, sT0))
        a("s_lshl_b32 %s, %s, 7" % (sT1, sSP))
        a("s_add_u32 %s, %s, %s" % (sT0, sT0, sT1))
        a("v_lshl_add_u32 v%d, v%d, 2, %s" % (vSt, t + 5, sT0))
        a("s_lshl_b32 %s, %s, 7" % (sT0, sHW))
        a("s_lshl_b32 %s, %s, 5" % (sT1, sDB))
        a("s_add_u32 %s, %s, %s" % (sT0, sT0, sT1))
        a("v_add_u32 v%d, %s, v%d" % (t + 5, sT0, t + 5))
        a("v_lshlrev_b32 v%d, 2, v%d" % (vTv, t + 5))
        a("s_lshl_b32 %s, %s, 9" % (sT1, sH))
        a("v_lshl_add_u32 v%d, v%d, 1, %s" % (vOo, t + 5, sT1))
        a("s_lshl_b32 %s, %s, 2" % (sT0, sT0))
        a("v_mul_u32_u24 v%d, %d, v%d" % (vLr, LSLOT, t + 1))
        a("v_lshl_add_u32 v%d, v%d, 4, v%d" % (vLr, t, vLr))
        a("v_add_u32 v%d, %s, v%d" % (vLr, sT0, vLr))
        a("v_lshlrev_b32 v%d, 5, v%d" % (t + 2, t + 2))
        a("v_lshl_add_u32 v%d, v%d, 1, v%d" % (t + 2, t + 4, t + 2))
        a("v_add_u32 v%d, v%d, v%d" % (t + 2, t + 2, t + 3))
        a("s_mul_i32 %s, %s, %d" % (sT0, sW, LSLOT))
        a("v_lshl_add_u32 v%d, v%d, 4, %s" % (vLw, t + 2, sT0))
        a("s_lshl_b32 %s, %s, 7" % (sT0, sHW))
        a("v_lshl_add_u32 v%d, v%d, 4, %s" % (vRec, t + 1, sT0))
        a("v_and_b32 v%d, 8, v1" % vMLw)
        a("v_add_lshl_u32 v%d, v%d, %s, 3" % (vMLw, vMLw, sW))
        a("s_mov_b32 %s, 0x%08x" % (sC, f2u(C_QK)))
        a("s_mov_b32 %s, 0x20000" % sRY)
        a("v_and_b32 v%d, 1, v1" % t)
        a("v_lshlrev_b32 v%d, 4, v%d" % (t, t))
        a("v_mov_b32 v%d, 0xffff" % (t + 1))
        a("v_lshlrev_b32 v%d, v%d, v%d" % (t, t, t + 1))
        a("v_bfe_u32 v%d, v1, 1, 2" % (t + 1))
        for i in range(4):
            a("v_cmp_eq_u32 vcc, %d, v%d" % (i, t + 1))
            a("s_nop 1")
            a("v_cndmask_b32 v%d, 0, v%d, vcc" % (vM + i, t))
    def qk(g):
        d = vS + 4 * (g // 2)
        q = (vQ0, vQ1)[g & 1]
        a("v_mfma_f32_16x16x32_bf16 v[%d:%d], v[%d:%d], v[%d:%d], %s" % (d, d + 3, vD + 4 * g, vD + 4 * g + 3, q, q + 3,
            "0" if g % 2 == 0 else "v[%d:%d]" % (d, d + 3)))
    def red(ps):
        for p in ps:
            b = vS + 4 * p
            a("v_add_f32_dpp v%d, v%d, v%d %s" % (b + 1, b, b + 1, dpp(0)))
            a("v_add_f32_dpp v%d, v%d, v%d %s" % (b + 3, b + 2, b + 3, dpp(2)))
        if len(ps) == 1: a("s_nop 0")
        for p in ps:
            b = vS + 4 * p
            a("v_add_f32_dpp v%d, v%d, v%d %s" % (b, b + 1, b + 3, dpp(1)))
    t0, t1, t2 = vT, vT + 1, vT + 2
    def soft1():
        red([0, 1, 2, 3, 4, 5, 6])
        a("v_max3_f32 v%d, v%d, v%d, v%d" % (t0, vS, vS + 4, vS + 8))
        a("v_max3_f32 v%d, v%d, v%d, v%d" % (t1, vS + 12, vS + 16, vS + 20))
        red([7])
        a("v_max3_f32 v%d, v%d, v%d, v%d" % (t0, t0, vS + 24, vS + 28))
        a("v_max_f32 v%d, v%d, v%d" % (t0, t0, t1))
        a("v_mov_b32 v%d, v%d" % (t1, t0))
        a("s_nop 1")
        a("v_permlane32_swap_b32 v%d, v%d" % (t0, t1))
        a("v_max_f32 v%d, v%d, v%d" % (t0, t0, t1))
        a("v_mov_b32 v%d, v%d" % (t1, t0))
        a("s_nop 1")
        a("v_permlane16_swap_b32 v%d, v%d" % (t0, t1))
        a("v_max_f32 v%d, v%d, v%d" % (t0, t0, t1))
        a("s_nop 1")
        a("v_mov_b32_dpp v%d, v%d %s" % (t1, t0, dpp(3)))
        a("s_nop 1")
        a("v_max_f32_dpp v%d, v%d, v%d row_half_mirror %s" % (t0, t1, t1, full))
        a("v_mul_f32 v%d, %s, v%d" % (t0, sC, t0))
    def soft2():
        P = G // 2
        for p in range(P):
            b = vS + 4 * p
            a("v_fma_f32 v%d, v%d, %s, -v%d" % (b, b, sC, t0))
        for p in range(P):
            b = vS + 4 * p
            a("v_exp_f32_dpp v%d, v%d %s" % (b + 1, b, dpp(3)))
        a("v_add_f32 v%d, v%d, v%d" % (t1, vS + 1, vS + 5))
        for p in range(2, P):
            a("v_add_f32 v%d, v%d, v%d" % (t1, t1, vS + 4 * p + 1))
        cv = lambda p: a("v_cvt_pk_bf16_f32 v%d, v%d, v%d" % (vP + p, vS + 4 * p + 1, vS + 4 * p + 1))
        a("v_mov_b32 v%d, v%d" % (t2, t1))
        cv(0); cv(1)
        a("v_permlane32_swap_b32 v%d, v%d" % (t1, t2))
        a("v_add_f32 v%d, v%d, v%d" % (t1, t1, t2))
        a("v_mov_b32 v%d, v%d" % (t2, t1))
        cv(2); cv(3)
        a("v_permlane16_swap_b32 v%d, v%d" % (t1, t2))
        a("v_add_f32 v%d, v%d, v%d" % (t2, t1, t2))
        cv(4); cv(5)
        a("v_add_f32_dpp v%d, v%d, v%d row_half_mirror %s" % (t1, t2, t2, full))
        cv(6); cv(7)
        a("ds_write_b64 v%d, v[%d:%d] offset:%d" % (vMLw, t0, t1, LML))
    def ands(g):
        src = vP + g // 2
        dst = vS + 4 * (g % 8)
        for i in range(4):
            if (i >> 1) == (g & 1): a("v_and_b32 v%d, v%d, v%d" % (dst + i, src, vM + i))
            else: a("v_and_b32_dpp v%d, v%d, v%d row_half_mirror %s" % (dst + i, src, vM + i, full))
    def pv(g):
        s = vS + 4 * (g % 8)
        a("v_mfma_f32_16x16x32_bf16 v[%d:%d], v[%d:%d], v[%d:%d], %s" % (vA, vA + 3, s, s + 3, vD + 4 * g, vD + 4 * g + 3,
            "0" if g == 0 else "v[%d:%d]" % (vA, vA + 3)))

    nqk = 0; nand = 0; npv = 0; phase = 0
    done = -1
    for i in range(2 * G):
        if i == qpos: qloads()
        if i == max(qpos, D0):
            consts(); st(2)
        if i >= D0 and i - D > done:
            wait_for(i - D); done = i - D
            if i == D and stamps and 9 in stamps: st0(8)
        if i >= G: assert nqk > i - G, "V overwrites unread K"
        issue(i)
        qdone = ("Q1" in ops and done >= 0 and ops.index(done) > ops.index("Q1"))
        if (i + 1) % BL == 0:
            if phase == 0:
                while qdone and nqk <= min(done, G - 1):
                    qk(nqk); nqk += 1
                if nqk == G:
                    st(3)
                    a("s_nop 7")
                    soft1(); soft2(); phase = 2
                    st(4)
                    while nand < 8:
                        ands(nand); nand += 1
            else:
                while npv < nand and npv + G <= done:
                    pv(npv); npv += 1
                while nand < min(G, npv + 8):
                    ands(nand); nand += 1
        if i == B0:
            a("s_barrier")
        if i == BA:
            assert phase == 2
            a("s_waitcnt lgkmcnt(0)")
            a("s_barrier")
            a("v_mov_b32 v%d, 0" % t0)
            a("ds_read_b32 v%d, v%d offset:%d" % (t0, t0, LROLE))
        if i == min(BA + BL, 2 * G - 1):
            a("s_waitcnt lgkmcnt(0)")
            a("v_readfirstlane_b32 %s, v%d" % (sFL, t0))
    st(12)
    while npv < G:
        if nand < min(G, npv + 8):
            while nand < min(G, npv + 8):
                ands(nand); nand += 1
            a("s_nop 0")
        if npv + G > done:
            wait_for(npv + G); done = npv + G
        else:
            a("s_nop 0")
        pv(npv); npv += 1
    st(5)
    a("s_bitcmp1_b32 %s, 0" % sFL)
    a("s_nop 6")
    a("ds_write_b128 v%d, v[%d:%d]" % (vLw, vA, vA + 3))
    a("s_waitcnt lgkmcnt(0)")
    a("s_barrier")
    st(6)
    vR = vT
    a("ds_read_b128 v[%d:%d], v%d offset:%d" % (vR, vR + 3, vRec, LREC))
    a("ds_read_b128 v[%d:%d], v%d" % (vA, vA + 3, vLr))
    a("s_waitcnt lgkmcnt(0)")
    def treduce():
        a("v_permlane32_swap_b32 v%d, v%d" % (vA, vA + 2))
        a("v_permlane32_swap_b32 v%d, v%d" % (vA + 1, vA + 3))
        a("v_add_f32 v%d, v%d, v%d" % (vA, vA, vA + 2))
        a("v_add_f32 v%d, v%d, v%d" % (vA + 1, vA + 1, vA + 3))
        a("s_nop 1")
        a("v_permlane16_swap_b32 v%d, v%d" % (vA, vA + 1))
        a("v_add_f32 v%d, v%d, v%d" % (vA, vA, vA + 1))
        a("s_nop 1")
        a("v_add_f32_dpp v%d, v%d, v%d row_ror:8 %s" % (vA, vA, vA, full))
    for r in (0, 2, 1, 3):
        a("v_mul_f32 v%d, v%d, v%d" % (vA + r, vR, vA + r))
    a("s_nop 0")
    treduce()
    a("v_min_u32 v%d, -2, v%d" % (vA, vA))
    a("s_cbranch_scc0 L_bs")
    a("global_store_dword v%d, v%d, %s %s" % (vSt, vA, WS, bpol))
    st(7)
    a("s_cmp_lg_u32 %s, 0" % sSP)
    a("s_cbranch_scc1 L_end")
    vB = vS
    a("ds_read_b32 v%d, v%d offset:%d" % (vR + 3, vTv, LTV))
    a("L_bp:")
    a("global_load_dwordx4 v[%d:%d], v%d, %s sc1" % (vB, vB + 3, vCb, WS))
    a("global_load_dwordx4 v[%d:%d], v%d, %s offset:1024 sc1" % (vB + 4, vB + 7, vCb, WS))
    a("s_sub_u32 %s, %s, 1" % (sRY, sRY))
    a("s_cbranch_scc1 L_end")
    a("s_waitcnt vmcnt(0)")
    a("v_max3_u32 v%d, v%d, v%d, v%d" % (vP, vB, vB + 1, vB + 2))
    a("v_max3_u32 v%d, v%d, v%d, v%d" % (vP + 1, vB + 3, vB + 4, vB + 5))
    a("v_max3_u32 v%d, v%d, v%d, v%d" % (vP, vP, vB + 6, vB + 7))
    a("v_max_u32 v%d, v%d, v%d" % (vP, vP, vP + 1))
    a("v_cmp_eq_u32 vcc, -1, v%d" % vP)
    a("s_and_b64 exec, exec, vcc")
    a("s_cbranch_scc1 L_bp")
    a("s_mov_b64 exec, -1")
    st(10)
    for r in (0, 2, 1, 3):
        a("v_mul_f32 v%d, v%d, v%d" % (vA + r, vR + 1, vB + r))
    for r in (0, 2, 1, 3):
        a("v_fmac_f32 v%d, v%d, v%d" % (vA + r, vR + 2, vB + 4 + r))
    a("s_waitcnt lgkmcnt(0)")
    treduce()
    a("v_add_f32 v%d, v%d, v%d" % (vA, vA, vR + 3))
    a("v_cvt_pk_bf16_f32 v%d, v%d, v%d" % (vA, vA, vA))
    st(11)
    a("global_store_short v%d, v%d, %s %s" % (vOo, vA, OUT, outpol))
    a("L_end:")
    if ST: a("s_branch L_diag")
    a("L_exit:")
    a("s_endpgm")
    a("L_bs:")
    a("v_add_u32 v%d, 0x%x, v%d" % (vSt, SLOW, vSt))
    a("global_store_dword v%d, v%d, %s sc1" % (vSt, vA, WS))
    a("s_waitcnt vmcnt(0)")
    a("s_barrier")
    a("s_cmp_lg_u32 %s, 0" % sW)
    a("s_cbranch_scc1 L_end")
    a("s_lshl_b32 %s, 1, %s" % (sT0, sSP))
    a("s_lshl_b32 %s, %s, 4" % (sT1, sH))
    a("v_mov_b32 v2, %s" % sT0)
    a("v_mov_b32 v3, %s" % sT1)
    a("s_mov_b64 exec, 1")
    a("global_atomic_or v3, v2, %s offset:4 sc1" % DBG)
    a("s_branch L_end")

    a("L_helper:")
    if hprio: a("s_setprio %d" % hprio)
    a("s_load_dwordx8 s[12:19], s[0:1], 32")
    a("s_load_dwordx2 s[20:21], s[0:1], 64")
    a("v_and_b32 v1, 63, v0")
    a("s_lshr_b32 %s, %s, 4" % (sH, sCH))
    a("s_and_b32 %s, %s, 15" % (sSP, sCH))
    a("v_and_b32 v6, 7, v1")
    a("v_lshrrev_b32 v7, 3, v1")
    a("v_lshrrev_b32 v10, 5, v1")
    a("s_lshl_b32 %s, %s, 15" % (sCO, sH))
    a("v_lshl_add_u32 v8, v6, 4, %s" % sCO)
    a("v_lshl_add_u32 v9, v7, 11, v8")
    a("v_add_u32 v8, 0x%x, v8" % HDR)
    a("s_getreg_b32 %s, hwreg(HW_REG_XCC_ID, 0, 4)" % sIN)
    a("s_add_u32 %s, %s, 1" % (sIN, sIN))
    a("s_lshl_b32 %s, %s, 4" % (sT0, sH))
    a("v_mov_b32 v18, %s" % sT0)
    a("s_mov_b32 %s, 0x20000" % sRY)
    a("s_mov_b32 %s, 1" % sFL)
    for i in range(4): a("v_mov_b32 v%d, -1" % (44 + i))
    a("s_cmp_lg_u32 %s, 0" % sSP)
    st(1)
    a("s_cbranch_scc1 L_prod")
    a("s_add_u32 %s, %s, 0x%x" % (sT0, sCO, HDR))
    a("v_lshl_add_u32 v11, v1, 4, %s" % sT0)
    a("s_waitcnt lgkmcnt(0)")
    a("global_store_dwordx4 v11, v[44:47], %s" % WS)
    a("global_store_dwordx4 v11, v[44:47], %s offset:1024" % WS)
    a("v_mov_b32 v19, %s" % sIN)
    a("s_load_dword %s, %s, 0" % (sMK, MK))
    a("s_waitcnt vmcnt(0)")
    a("s_mov_b64 exec, 1")
    a("global_store_dword v18, v19, %s sc1" % DBG)
    a("s_mov_b64 exec, -1")
    st(2)
    a("v_bfe_u32 v11, v1, 3, 1")
    a("v_lshl_or_b32 v11, v11, 8, v5")
    a("s_lshl_b32 %s, %s, 9" % (sT1, sH))
    a("v_or_b32 v11, %s, v11" % sT1)
    a("global_load_dwordx4 v[20:23], v11, %s" % QS)
    if touch:
        a("v_lshl_add_u32 v11, v1, 2, %s" % sT1)
        a("global_load_dword v30, v11, %s" % OUT)
    a("s_lshl_b32 %s, %s, 8" % (sT1, sH))
    a("v_or_b32 v11, %s, v5" % sT1)
    a("global_load_dwordx4 v[24:27], v11, %s" % KT)
    a("v_and_b32 v11, 31, v1")
    a("v_lshl_add_u32 v11, v11, 3, %s" % sT1)
    a("global_load_dwordx2 v[28:29], v11, %s" % VT)
    a("s_mov_b32 %s, 0x%08x" % (sC, f2u(C_QK)))
    a("s_barrier")
    a("s_waitcnt vmcnt(0) lgkmcnt(0)")
    a("v_mfma_f32_16x16x32_bf16 v[32:35], v[24:27], v[20:23], 0")
    a("s_lshl_b32 %s, %s, 16" % (sMK, sMK))
    a("v_sub_f32 v11, 1.0, %s" % sMK)
    a("v_mul_f32 v11, 0x%08x, v11" % f2u(C_MASK))
    a("v_lshlrev_b32 v24, 16, v28")
    a("v_and_b32 v25, 0xffff0000, v28")
    a("v_lshlrev_b32 v26, 16, v29")
    a("v_and_b32 v27, 0xffff0000, v29")
    a("v_cmp_gt_u32 vcc, 32, v1")
    a("v_add_f32_dpp v33, v32, v33 %s" % dpp(0))
    a("v_add_f32_dpp v35, v34, v35 %s" % dpp(2))
    a("s_nop 0")
    a("v_add_f32_dpp v32, v33, v35 %s" % dpp(1))
    a("v_fma_f32 v32, v32, %s, v11" % sC)
    a("s_nop 1")
    a("v_mov_b32_dpp v33, v32 row_newbcast:3 %s" % full)
    a("v_mov_b32_dpp v34, v32 row_newbcast:11 %s" % full)
    a("v_cndmask_b32 v20, v34, v33, vcc")
    a("s_branch L_post")
    a("L_prod:")
    a("s_mov_b32 %s, %d" % (sT1, tries - 1))
    a("s_waitcnt lgkmcnt(0)")
    a("s_barrier")
    a("L_fl:")
    a("global_load_dword v19, v18, %s sc1" % DBG)
    a("s_waitcnt vmcnt(0)")
    a("v_readfirstlane_b32 %s, v19" % sT0)
    a("s_nop 0")
    a("s_cmp_lg_u32 %s, 0" % sT0)
    a("s_cbranch_scc1 L_fl2")
    a("s_sub_u32 %s, %s, 1" % (sT1, sT1))
    a("s_cbranch_scc0 L_fl")
    a("L_fl2:")
    a("s_cmp_eq_u32 %s, %s" % (sT0, sIN))
    a("s_cselect_b32 %s, %d, 0" % (sFL, 1 if fast else 0))
    if slowsel is not None:
        a("s_lshr_b32 %s, 0x%x, %s" % (sT0, slowsel, sSP))
        a("s_andn2_b32 %s, %s, %s" % (sFL, sFL, sT0))
    a("L_post:")
    st(3)
    a("v_mov_b32 v12, %s" % sFL)
    a("v_mov_b32 v13, 0")
    a("ds_write_b32 v13, v12 offset:%d" % LROLE)
    a("v_lshl_add_u32 v11, v10, 3, v6")
    a("v_lshlrev_b32 v12, 3, v11")
    a("v_lshlrev_b32 v11, 4, v11")
    a("s_lshl_b32 %s, %s, 7" % (sT0, sSP))
    a("v_lshl_add_u32 v13, v10, 3, v8")
    a("v_add_u32 v13, %s, v13" % sT0)
    a("s_bitcmp1_b32 %s, 0" % sFL)
    a("s_cbranch_scc0 L_nomk")
    a("v_add_u32 v52, %s, v9" % sT0)
    if prep & 1: a("global_load_dwordx4 v[48:51], v52, %s %s" % (WS, ppol))
    if prep & 8: a("s_waitcnt vmcnt(0)")
    a("global_store_dwordx4 v52, v[44:47], %s %s" % (WS, mpol))
    if prep & 2: a("global_load_dwordx4 v[48:51], v52, %s %s" % (WS, ppol))
    a("L_nomk:")
    a("s_waitcnt lgkmcnt(0)")
    st(4)
    a("s_barrier")
    a("ds_read_b64 v[14:15], v12 offset:%d" % LML)
    a("s_waitcnt lgkmcnt(0)")
    def rowred(op, dst, src, steps):
        cur = src
        for s in steps:
            a("s_nop 1")
            a("%s_dpp v%d, v%d, v%d row_ror:%d %s" % (op, dst, cur, cur, s, full))
            cur = dst
    rowred("v_max_f32", 16, 14, (1, 2, 4))
    a("v_sub_f32 v14, v14, v16")
    a("v_exp_f32 v14, v14")
    a("s_bitcmp1_b32 %s, 0" % sFL)
    a("v_mul_f32 v15, v14, v15")
    a("ds_write_b32 v11, v14 offset:%d" % LREC)
    rowred("v_add_f32", 17, 15, (1, 2, 4))
    a("v_min_u32 v16, -2, v16")
    a("v_min_u32 v17, -2, v17")
    a("s_cbranch_scc1 L_hf")
    a("v_add_u32 v13, 0x%x, v13" % SLOW)
    a("global_store_dwordx2 v13, v[16:17], %s sc1" % WS)
    a("s_waitcnt vmcnt(0)")
    a("s_branch L_hend")
    a("L_hf:")
    a("s_waitcnt vmcnt(0)")
    a("global_store_dwordx2 v13, v[16:17], %s" % WS)
    if prep & 4: a("global_load_dwordx4 v[48:51], v52, %s %s" % (WS, ppol))
    st(5)
    a("s_cmp_lg_u32 %s, 0" % sSP)
    a("s_cbranch_scc1 L_hend")
    a("v_and_b32 v12, 15, v1")
    a("s_add_u32 %s, %s, 0x%x" % (sT0, sCO, HDR))
    a("v_lshl_add_u32 v13, v12, 7, %s" % sT0)
    a("v_lshl_add_u32 v13, v10, 3, v13")
    a("s_mov_b32 %s, 0" % sRT)
    a("L_hp:")
    a("global_load_dwordx2 v[14:15], v13, %s sc1" % WS)
    a("global_load_dword v19, v18, %s offset:4 sc1" % DBG)
    a("s_sub_u32 %s, %s, 1" % (sRY, sRY))
    a("s_cbranch_scc1 L_hend")
    a("s_waitcnt vmcnt(0)")
    a("v_max_u32 v16, v14, v15")
    a("v_readfirstlane_b32 %s, v19" % sT0)
    a("v_cmp_eq_u32 vcc, -1, v16")
    a("s_cbranch_vccz L_hok")
    a("s_andn2_b32 %s, %s, %s" % (sT0, sT0, sRT))
    a("s_cbranch_scc0 L_hp")
    a("s_ff1_i32_b32 %s, %s" % (sT0, sT0))
    a("s_bitset1_b32 %s, %s" % (sRT, sT0))
    a("s_lshl_b32 %s, %s, 7" % (sT0, sT0))
    a("v_add_u32 v32, %s, v9" % sT0)
    a("v_add_u32 v33, %s, v8" % sT0)
    a("v_add_u32 v34, 0x%x, v32" % SLOW)
    a("v_add_u32 v35, 0x%x, v33" % SLOW)
    a("global_load_dwordx4 v[36:39], v34, %s sc1" % WS)
    a("global_load_dwordx4 v[40:43], v35, %s sc1" % WS)
    a("s_waitcnt vmcnt(0)")
    a("global_store_dwordx4 v32, v[36:39], %s" % WS)
    a("global_store_dwordx4 v33, v[40:43], %s" % WS)
    a("s_waitcnt vmcnt(0)")
    a("s_branch L_hp")
    a("L_hok:")
    st(8)
    a("v_max_f32 v16, v14, v20")
    rowred("v_max_f32", 16, 16, (1, 2, 4, 8))
    a("v_sub_f32 v14, v14, v16")
    a("v_sub_f32 v20, v20, v16")
    a("v_exp_f32 v14, v14")
    a("v_exp_f32 v20, v20")
    a("v_mul_f32 v15, v14, v15")
    rowred("v_add_f32", 15, 15, (1, 2, 4, 8))
    a("v_add_f32 v15, v15, v20")
    a("v_rcp_f32 v15, v15")
    a("v_bfe_u32 v12, v1, 3, 1")
    a("v_lshl_add_u32 v11, v12, 2, v11")
    a("v_mul_f32 v14, v14, v15")
    a("v_mul_f32 v20, v20, v15")
    a("ds_write_b32 v11, v14 offset:%d" % (LREC + 4))
    for i in range(4): a("v_mul_f32 v%d, v20, v%d" % (24 + i, 24 + i))
    a("v_lshlrev_b32 v12, 4, v1")
    a("ds_write_b128 v12, v[24:27] offset:%d" % LTV)
    a("L_hend:")
    a("s_waitcnt lgkmcnt(0)")
    st(9)
    if ST:
        a("s_barrier")
        a("L_diag:")
        a("s_mov_b64 exec, -1")
        if ST == "st": st0.dump(sW, NW + 1, WS)
        else: st0.encode(int(ST), k=enc_k)
    a("s_endpgm")
    return wrap(a.text(), NWG, (NW + 1) * 64, LDS, nv, nsgpr=96)

if __name__ == "__main__":
    kw = {}
    for x in sys.argv[1:]:
        k, v = x.split("=")
        try: v = eval(v)
        except: pass
        kw[k] = v
    if "ST" in kw and kw["ST"] != "st": kw["ST"] = str(kw["ST"])
    sys.stdout.write(gen(**kw))
```

```python
import math, struct
KNAME = "standalone__tree_speculative_verify_tree_attention_over_candidate_token_tree__decode"
HEADER = open("cdna_kernels/%s.s.ref" % KNAME).read().split("; Override launch")[0]

def f2u(x):
    return struct.unpack("<I", struct.pack("<f", x))[0]

SCALE = 128 ** -0.5
LOG2E = math.log2(math.e)
C_QK = SCALE * LOG2E
C_MASK = -1.0e9 * LOG2E

class Asm:
    def __init__(self):
        self.lines = []
    def __call__(self, s=""):
        for l in s.split("\n"):
            self.lines.append("    " + l.strip() if not l.strip().endswith(":") else l.strip())
    def text(self):
        return "\n".join(self.lines) + "\n"

def wrap(body, grid, block, lds, nvgpr, nsgpr=96, accum=None, kname=KNAME + "_kernel", extra_desc=""):
    if accum is None:
        accum = (nvgpr + 3) // 4 * 4
    s = HEADER
    s += "; @launch grid=(%d,1,1) block=(%d,1,1) lds=%d\n" % (grid, block, lds)
    s += '.amdgcn_target "amdgcn-amd-amdhsa--gfx950"\n.text\n'
    s += ".globl %s\n.p2align 8\n.type %s,@function\n%s:\n" % (kname, kname, kname)
    s += body
    s += '.section .rodata,"a"\n.p2align 6\n.amdhsa_kernel %s\n' % kname
    s += "  .amdhsa_next_free_vgpr %d\n  .amdhsa_next_free_sgpr %d\n  .amdhsa_accum_offset %d\n" % (nvgpr, nsgpr, accum)
    s += "  .amdhsa_group_segment_fixed_size 0\n  .amdhsa_kernarg_size 72\n  .amdhsa_user_sgpr_count 2\n"
    s += "  .amdhsa_user_sgpr_kernarg_segment_ptr 1\n  .amdhsa_system_sgpr_workgroup_id_x 1\n"
    s += extra_desc
    s += ".end_amdhsa_kernel\n"
    return s


class Stamps:
    def __init__(self, a, on, base=48, n=14):
        self.a, self.on, self.base, self.n = a, on, base, n
    def init(self):
        if not self.on: return
        self.a("s_memrealtime s[%d:%d]" % (self.base, self.base + 1))
        for i in range(1, self.n):
            self.a("s_mov_b64 s[%d:%d], 0" % (self.base + 2 * i, self.base + 2 * i + 1))
    def __call__(self, i):
        if not self.on: return
        self.a("s_memrealtime s[%d:%d]" % (self.base + 2 * i, self.base + 2 * i + 1))
    def dump(self, wave_sgpr, nw, ws, off=0x8000000):
        if not self.on: return
        a = self.a
        a("s_waitcnt vmcnt(0)")
        self(self.n - 1)
        a("L_dwait:")
        a("s_sleep 16")
        a("s_memrealtime s[46:47]")
        a("s_waitcnt lgkmcnt(0)")
        a("s_sub_u32 s45, s46, s%d" % self.base)
        a("s_cmp_lt_u32 s45, 1400")
        a("s_cbranch_scc1 L_dwait")
        a("s_mul_i32 s44, s2, %d" % nw)
        a("s_add_u32 s44, s44, %s" % wave_sgpr)
        a("s_lshl_b32 s44, s44, 7")
        a("s_add_u32 s44, s44, 0x%x" % off)
        a("s_mov_b64 exec, 1")
        a("v_mov_b32 v1, s44")
        a("s_getreg_b32 s45, hwreg(HW_REG_XCC_ID)")
        a("s_getreg_b32 s46, hwreg(HW_REG_HW_ID)")
        a("s_waitcnt lgkmcnt(0)")
        for i in range(self.n):
            a("v_mov_b32 v2, s%d" % (self.base + 2 * i))
            a("v_mov_b32 v3, s%d" % (self.base + 2 * i + 1))
            a("global_store_dwordx2 v1, v[2:3], %s offset:%d" % (ws, 8 * i))
        a("v_mov_b32 v2, s45")
        a("v_mov_b32 v3, s46")
        a("global_store_dwordx2 v1, v[2:3], %s offset:%d" % (ws, 8 * 15))

    def encode(self, idx, X=4000, k=1):
        a = self.a
        b = self.base
        a("s_waitcnt vmcnt(0)")
        self(self.n - 1)
        a("s_waitcnt lgkmcnt(0)")
        a("s_sub_u32 s44, s%d, s%d" % (b + 2 * idx, b))
        a("s_cmp_eq_u32 s%d, 0" % (b + 2 * idx))
        a("s_cselect_b32 s44, 0, s44")
        a("s_mul_i32 s44, s44, %d" % k)
        a("s_add_u32 s44, s44, %d" % X)
        a("L_spin:")
        a("s_memrealtime s[46:47]")
        a("s_waitcnt lgkmcnt(0)")
        a("s_sub_u32 s45, s46, s%d" % b)
        a("s_cmp_lt_u32 s45, s44")
        a("s_cbranch_scc1 L_spin")
```

```python
import sys
from common import *

def gen(ST=False, pol="nt", D=4, DV=None, B0=15, fast=1, touch=1, outpol="", stamps=None, enc_k=10, tries=4, slowsel=None,
        hprio=0, wb=(3, 2, 4), cg=(1, 2, 32, 64), brk=1, NP=3, late=16, EB=31, npre=4, treesp=1, masked=0, fprio=0, RY=0x400000, hbar=1, lin=1, early=1, two=0, na=6, nb=4, pk=1, b1pos=12, qpos=None, ex=0, fd=None):
    NW, G, NWG, BL = 8, 16, 256, 4
    DV = DV or [D] * 28 + [D - 1] * 4
    a = Asm()
    st0 = Stamps(a, ST, base=64)
    def st(i):
        if stamps is None or i in stamps: st0(i)
    QS, KS, VS, KT = "s[4:5]", "s[6:7]", "s[8:9]", "s[10:11]"
    VT, MK, OUT, DBG, WS = "s[12:13]", "s[14:15]", "s[16:17]", "s[18:19]", "s[20:21]"
    sW, sH, sSP, sC, sIN, sFL, sT0, sT1, sCH = "s28", "s29", "s30", "s31", "s32", "s33", "s34", "s35", "s36"
    sMK, sDN, sRY, sCL, sCO = "s37", "s38", "s39", "s40", "s41"
    vKo, vVo = 2, 3
    vLin, vSt, vMw, vMr = 4, 5, 6, 7
    vA = 8
    vX = 12
    vHa, vBa, vOa = 12, 13, 14
    vH = 16
    vM = 20
    vT = 24
    vP = 32
    vS = 40
    vQ0, vQ1 = 72, 76
    vD = 104
    nv = 168
    dpp = lambda p: "quad_perm:[%d,%d,%d,%d] row_mask:0xf bank_mask:0xf" % (p, p, p, p)
    full = "row_mask:0xf bank_mask:0xf"
    LM = 8192
    LL = LM + 128
    LROLE = LL + 128
    LDS = LROLE + 16
    HDR = 0x40000
    SLOW = 0x80000

    a("s_load_dwordx8 s[4:11], s[0:1], 0")
    st0.init()
    a("s_cmp_ge_u32 s2, %d" % NWG)
    a("s_cbranch_scc1 L_exit")
    a("v_lshrrev_b32 v4, 6, v0")
    a("v_and_b32 v2, 3, v0")
    a("s_and_b32 %s, s2, 7" % sT0)
    a("v_readfirstlane_b32 %s, v4" % sW)
    a("s_lshr_b32 %s, s2, 3" % sT1)
    a("s_lshl_b32 %s, %s, 5" % (sT0, sT0))
    a("s_or_b32 %s, %s, %s" % (sCH, sT0, sT1))
    a("s_lshl_b32 %s, %s, 17" % (sT0, sCH))
    a("v_bfe_u32 v5, v0, 4, 2")
    a("v_lshlrev_b32 v2, 4, v2")
    a("v_lshl_or_b32 v5, v5, 6, v2")
    a("v_bfe_u32 v6, v0, 2, 2")
    if tuple(wb) == (wb[0], wb[0] + 1, wb[0] + 2):
        a("v_lshl_or_b32 v3, v4, %d, %s" % (wb[0] + 10, sT0))
    else:
        a("v_bfe_u32 v7, v0, 6, 1"); a("v_lshl_or_b32 v3, v7, %d, %s" % (wb[0] + 10, sT0))
        a("v_bfe_u32 v7, v0, 7, 1"); a("v_lshl_or_b32 v3, v7, %d, v3" % (wb[1] + 10))
        a("v_bfe_u32 v7, v0, 8, 1"); a("v_lshl_or_b32 v3, v7, %d, v3" % (wb[2] + 10))
    a("v_lshl_or_b32 v2, v6, 8, v5")
    a("s_cmp_eq_u32 %s, 8" % sW)
    a("v_or_b32 v%d, v2, v3" % vKo)
    a("s_cbranch_scc1 L_helper")
    a("s_waitcnt lgkmcnt(0)")
    st(1)
    def gx(g):
        x = 0
        for k in range(4):
            if g >> k & 1: x ^= cg[k]
        return x << 10
    immmask = 0
    for b in (0, 1):
        if b not in wb: immmask |= 1024 << b
    class Stream:
        def __init__(s): s.cur = {vKo: 0, vVo: 0}; s.ops = []; s.done = -1
        def copy(s):
            t = Stream(); t.cur = dict(s.cur); t.ops = list(s.ops); t.done = s.done; return t
        def issue(s, i):
            g = i % G
            vo, base = (vKo, KS) if i < G else (vVo, VS)
            x = gx(g); hi = x & ~immmask
            if hi != s.cur[vo]:
                a("v_xor_b32 v%d, 0x%x, v%d" % (vo, hi ^ s.cur[vo], vo)); s.cur[vo] = hi
            a("global_load_dwordx4 v[%d:%d], v%d, %s offset:%d %s" % (vD + 4 * g, vD + 4 * g + 3, vo, base, x & immmask, pol))
            s.ops.append(i)
        def wait(s, x):
            if x > s.done:
                a("s_waitcnt vmcnt(%d)" % (len(s.ops) - 1 - s.ops.index(x))); s.done = x
                return True
            return False
        def slot(s, i):
            if not (i - DV[i] >= 0 and s.wait(i - DV[i])) and brk and i: a("s_nop 0")
            s.issue(i)
    S = Stream()
    def qloads():
        a("s_load_dwordx8 s[12:19], s[0:1], 32")
        a("s_load_dwordx2 s[20:21], s[0:1], 64")
        a("s_lshr_b32 %s, %s, 4" % (sH, sCH))
        a("v_bfe_u32 v6, v0, 3, 1")
        a("v_lshl_or_b32 v7, v6, 8, v5")
        a("s_lshl_b32 %s, %s, 9" % (sT1, sH))
        a("v_or_b32 v7, %s, v7" % sT1)
        for i in range(8): a("v_mov_b32 v%d, 0" % (vQ0 + i))
        a("s_mov_b32 s22, 0x0f0f0f0f"); a("s_mov_b32 s23, s22")
        a("s_mov_b64 exec, s[22:23]")
        a("global_load_dwordx4 v[%d:%d], v7, %s" % (vQ0, vQ0 + 3, QS))
        a("s_not_b64 exec, exec")
        a("global_load_dwordx4 v[%d:%d], v7, %s" % (vQ1, vQ1 + 3, QS))
        a("s_mov_b64 exec, -1")
        S.ops.extend(["Q0", "Q1"])
    def consts():
        t = vT
        a("v_and_b32 v1, 63, v0")
        a("v_lshlrev_b32 v%d, 4, v1" % vLin)
        a("v_or_b32 v%d, v%d, v3" % (vVo, vLin))
        a("v_lshlrev_b32 v%d, 6, v6" % vMr)
        a("s_lshl_b32 %s, %s, 2" % (sT0, sW))
        a("v_add_u32 v%d, %s, v%d" % (vMw, sT0, vMr))
        a("s_and_b32 %s, %s, 15" % (sSP, sCH))
        a("v_lshrrev_b32 v%d, 5, v1" % t)
        a("v_bfe_u32 v%d, v1, 4, 1" % (t + 1))
        a("s_lshl_b32 %s, %s, 10" % (sT0, sCH))
        if lin:
            a("v_add_u32 v%d, %s, v%d" % (vSt, sT0, vLin))
        else:
            a("v_and_b32 v%d, 15, v1" % (t + 2))
            a("v_lshl_add_u32 v%d, v%d, 5, v%d" % (t + 3, t, t + 1))
            a("v_lshl_add_u32 v%d, v%d, 1, v%d" % (t + 3, t + 2, t + 3))
            a("v_lshl_add_u32 v%d, v%d, 4, %s" % (vSt, t + 3, sT0))
        a("v_lshrrev_b32 v%d, 2, v1" % (t + 2))
        a("v_and_b32 v%d, 3, v1" % (t + 3))
        a("s_lshl_b32 %s, %s, 14" % (sCO, sH))
        a("v_lshl_add_u32 v%d, v%d, 10, %s" % (vBa, t + 2, sCO))
        a("v_lshl_add_u32 v%d, v%d, 4, v%d" % (vBa, t + 3, vBa))
        a("s_lshl_b32 %s, %s, 8" % (sT0, sH))
        a("s_add_u32 %s, %s, 0x%x" % (sT0, sT0, HDR))
        a("v_lshl_add_u32 v%d, v%d, 4, %s" % (vHa, t + 2, sT0))
        a("v_lshl_add_u32 v%d, v%d, 1, v%d" % (t, t, t + 1))
        a("v_lshl_add_u32 v%d, v%d, %d, v%d" % (t, t + 3, 3 if lin else 2, t))
        a("v_lshl_add_u32 v%d, v%d, 1, %s" % (vOa, t, sT1))
        a("s_mov_b32 %s, 0x%08x" % (sC, f2u(C_QK)))
        a("v_and_b32 v%d, 1, v1" % t)
        a("v_lshlrev_b32 v%d, 4, v%d" % (t, t))
        a("v_mov_b32 v%d, 0xffff" % (t + 1))
        a("v_lshlrev_b32 v%d, v%d, v%d" % (t, t, t + 1))
        a("v_bfe_u32 v%d, v1, 1, 2" % (t + 1))
        for i in range(4):
            a("v_cmp_eq_u32 vcc, %d, v%d" % (i, t + 1))
            a("s_nop 1")
            a("v_cndmask_b32 v%d, 0, v%d, vcc" % (vM + i, t))
    def qk(g):
        d = vS + 4 * (g // 2)
        q = (vQ0, vQ1)[g & 1]
        a("v_mfma_f32_16x16x32_bf16 v[%d:%d], v[%d:%d], v[%d:%d], %s" % (d, d + 3, vD + 4 * g, vD + 4 * g + 3, q, q + 3,
            "0" if g % 2 == 0 else "v[%d:%d]" % (d, d + 3)))
    t0, t1, t2 = vT, vT + 1, vT + 2
    P = G // 2
    def soft1():
        for p in range(P):
            b = vS + 4 * p
            a("v_add_f32_dpp v%d, v%d, v%d %s" % (b + 1, b, b + 1, dpp(0)))
            a("v_add_f32_dpp v%d, v%d, v%d %s" % (b + 3, b + 2, b + 3, dpp(2)))
        for p in range(P):
            b = vS + 4 * p
            a("v_add_f32_dpp v%d, v%d, v%d %s" % (b, b + 1, b + 3, dpp(1)))
        a("v_max3_f32 v%d, v%d, v%d, v%d" % (t0, vS, vS + 4, vS + 8))
        a("v_max3_f32 v%d, v%d, v%d, v%d" % (t1, vS + 12, vS + 16, vS + 20))
        a("v_max3_f32 v%d, v%d, v%d, v%d" % (t0, t0, vS + 24, vS + 28))
        a("v_max_f32 v%d, v%d, v%d" % (t0, t0, t1))
        a("v_mov_b32 v%d, v%d" % (t1, t0))
        a("s_nop 1")
        a("v_permlane32_swap_b32 v%d, v%d" % (t0, t1))
        a("v_max_f32 v%d, v%d, v%d" % (t0, t0, t1))
        a("v_mov_b32 v%d, v%d" % (t1, t0))
        a("s_nop 1")
        a("v_permlane16_swap_b32 v%d, v%d" % (t0, t1))
        a("v_max_f32 v%d, v%d, v%d" % (t0, t0, t1))
        a("s_nop 1")
        a("v_mov_b32_dpp v%d, v%d %s" % (t1, t0, dpp(3)))
        a("s_nop 1")
        a("v_max_f32_dpp v%d, v%d, v%d row_half_mirror %s" % (t0, t1, t1, full))
        a("v_mul_f32 v%d, %s, v%d" % (t0, sC, t0))
        a("ds_write_b32 v%d, v%d offset:%d" % (vMw, t0, LM))
        a("s_waitcnt lgkmcnt(0)")
        a("s_barrier")
        a("ds_read_b128 v[%d:%d], v%d offset:%d" % (vT, vT + 3, vMr, LM))
        a("ds_read_b128 v[%d:%d], v%d offset:%d" % (vT + 4, vT + 7, vMr, LM + 16))
        a("ds_read_b32 v%d, v%d offset:%d" % (vP, vMr, LM + 32))
    def soft2():
        a("s_waitcnt lgkmcnt(0)")
        a("v_max3_f32 v%d, v%d, v%d, v%d" % (t0, vT, vT + 1, vT + 2))
        a("v_max3_f32 v%d, v%d, v%d, v%d" % (vT + 3, vT + 3, vT + 4, vT + 5))
        a("v_max3_f32 v%d, v%d, v%d, v%d" % (t0, t0, vT + 6, vT + 7))
        a("v_max3_f32 v%d, v%d, v%d, v%d" % (t0, t0, vT + 3, vP))
        for p in range(P):
            b = vS + 4 * p
            a("v_fma_f32 v%d, v%d, %s, -v%d" % (b, b, sC, t0))
        for p in range(P):
            b = vS + 4 * p
            a("v_exp_f32_dpp v%d, v%d %s" % (b + 1, b, dpp(3)))
        a("v_add_f32 v%d, v%d, v%d" % (t1, vS + 1, vS + 5))
        for p in range(2, P):
            a("v_add_f32 v%d, v%d, v%d" % (t1, t1, vS + 4 * p + 1))
        cv = lambda p: a("v_cvt_pk_bf16_f32 v%d, v%d, v%d" % (vP + p, vS + 4 * p + 1, vS + 4 * p + 1))
        a("v_mov_b32 v%d, v%d" % (t2, t1))
        cv(0); cv(1)
        a("v_permlane32_swap_b32 v%d, v%d" % (t1, t2))
        a("v_add_f32 v%d, v%d, v%d" % (t1, t1, t2))
        a("v_mov_b32 v%d, v%d" % (t2, t1))
        cv(2); cv(3)
        a("v_permlane16_swap_b32 v%d, v%d" % (t1, t2))
        a("v_add_f32 v%d, v%d, v%d" % (t2, t1, t2))
        cv(4); cv(5)
        a("v_add_f32_dpp v%d, v%d, v%d row_half_mirror %s" % (t1, t2, t2, full))
        cv(6); cv(7)
        a("ds_write_b32 v%d, v%d offset:%d" % (vMw, t1, LL))
    def ands(g):
        src = vP + g // 2
        dst = vS + 4 * g
        for i in range(4):
            if (i >> 1) == (g & 1): a("v_and_b32 v%d, v%d, v%d" % (dst + i, src, vM + i))
            else: a("v_and_b32_dpp v%d, v%d, v%d row_half_mirror %s" % (dst + i, src, vM + i, full))
    def pv(g, zero):
        s = vS + 4 * g
        a("v_mfma_f32_16x16x32_bf16 v[%d:%d], v[%d:%d], v[%d:%d], %s" % (vA, vA + 3, s, s + 3, vD + 4 * g, vD + 4 * g + 3,
            "0" if zero else "v[%d:%d]" % (vA, vA + 3)))

    nqk = 0
    for i in range(G):
        if i == (qpos or D):
            qloads(); consts(); st(2)
        S.slot(i)
        if (i + 1) % BL == 0:
            qdone = "Q1" in S.ops and S.done >= 0 and S.ops.index(S.done) > S.ops.index("Q1")
            while qdone and nqk <= S.done:
                qk(nqk); nqk += 1
        if i == B0: a("s_barrier")
    assert late in (12, 16)
    if late == 16:
        F = S.copy()
        a("s_cmp_eq_u32 %s, 7" % sW)
        a("s_cbranch_scc1 L_k7")
    for i in range(16, 20):
        assert nqk > i - G
        S.slot(i)
    S.wait(15)
    if late == 16:
        a("s_branch L_k8")
        a("L_k7:")
        a("s_waitcnt vmcnt(0)")
        a("L_k8:")
    else:
        F = S.copy()
    while nqk < G:
        qk(nqk); nqk += 1
    st(3)
    soft1()
    a("s_cmp_eq_u32 %s, 7" % sW)
    a("s_cbranch_scc1 L_s2")
    for i in range(20, 24): S.slot(i)
    a("L_s2:")
    soft2()
    for g in range(G): ands(g)
    a("s_waitcnt lgkmcnt(0)")
    st(4)
    a("s_barrier")
    a("v_mov_b32 v%d, 0" % t0)
    a("ds_read_b32 v%d, v%d offset:%d" % (t0, t0, LROLE))
    a("s_cbranch_scc1 L_fin")
    npv = 0
    for i in range(24, 32):
        S.slot(i)
        if i == EB and EB < 31: a("s_barrier")
        if (i + 1) % BL == 0 and i < 31:
            while npv + G <= S.done:
                pv(npv, npv == 0); npv += 1
    if ex:
        a("s_cmp_lg_u32 %s, 1" % sW)
        a("s_cbranch_scc1 L_ex")
        a("s_waitcnt vmcnt(%d)" % (4 - ex))
        a("L_ex:")
    a("s_cmp_lg_u32 %s, 0" % sW)
    a("s_cbranch_scc1 L_nh")
    a("s_lshr_b32 %s, %s, 3" % (sT0, sSP))
    a("s_lshl_b32 %s, %s, 3" % (sT0, sT0))
    a("v_add_u32 v%d, %s, v%d" % (vT + 1, sT0, vHa))
    a("global_load_dwordx2 v[%d:%d], v%d, %s sc1" % (vH, vH + 1, vT + 1, WS))
    a("L_nh:")
    if EB == 31: a("s_barrier")
    st(12)
    a("s_lshl_b32 %s, %s, 10" % (sT0, sW))
    a("v_add_u32 v%d, %s, v%d" % (vT + 2, sT0, vLin))
    while npv < G:
        if two and npv == b1pos:
            a("s_cmp_lt_u32 %s, 4" % sW)
            a("s_cbranch_scc1 L_b1")
            a("s_barrier")
            a("L_b1:")
        S.wait(npv + G)
        pv(npv, npv == 0); npv += 1
    st(5)
    a("s_waitcnt lgkmcnt(0)")
    a("v_readfirstlane_b32 %s, v%d" % (sFL, t0))
    a("s_nop 5")
    a("ds_write_b128 v%d, v[%d:%d]" % (vT + 2, vA, vA + 3))
    if two:
        a("s_waitcnt lgkmcnt(0)")
        a("s_barrier")
        a("s_cbranch_scc0 L_end")
        a("s_cmp_eq_u32 %s, 0" % sW)
        a("s_cselect_b32 %s, %s, 0" % (sFL, sFL))
        a("s_cmp_eq_u32 %s, 0" % sFL)
        a("s_barrier")
    else:
        a("s_cmp_eq_u32 %s, 0" % sW)
        a("s_cselect_b32 %s, %s, 0" % (sFL, sFL))
        a("s_cmp_eq_u32 %s, 0" % sFL)
        a("s_waitcnt lgkmcnt(0)")
        a("s_barrier")
    a("s_cbranch_scc1 L_end")
    vB = vS
    a("s_mov_b32 %s, 0" % sCL)
    a("s_cmp_eq_u32 %s, 0" % sSP)
    a("s_cselect_b32 %s, 0, -1" % sDN)
    a("s_mov_b32 %s, 0x%x" % (sRY, RY))
    a("L_col:")
    a("s_lshl_b32 %s, %s, 6" % (sT0, sSP))
    a("v_add_u32 v%d, %s, v%d" % (vT + 2, sT0, vBa))
    if lin:
        a("s_and_b32 %s, %s, 0xc0" % (sT0, sT0))
        a("s_mul_i32 %s, %s, 34" % (sT1, sSP))
        a("s_and_b32 %s, %s, 0x108" % (sT1, sT1))
        a("s_or_b32 %s, %s, %s" % (sT0, sT0, sT1))
    else:
        a("s_lshl_b32 %s, %s, 5" % (sT0, sSP))
    a("v_add_u32 v%d, %s, v%d" % (vT + 3, sT0, vOa))
    for r in range(4): a("v_mov_b32 v%d, -1" % (vB + r))
    a("L_hc:")
    a("v_max_u32 v%d, v%d, v%d" % (vT + 4, vH, vH + 1))
    a("v_cmp_eq_u32 vcc, -1, v%d" % (vT + 4))
    a("s_cbranch_vccnz L_hr")
    a("L_hok:")
    st(8)
    if early: a("global_load_dwordx4 v[%d:%d], v%d, %s sc1" % (vB, vB + 3, vT + 2, WS))
    def allred(op, x, src):
        y = x + 1
        a("%s_dpp v%d, v%d, v%d row_ror:8 %s" % (op, x, src, src, full))
        a("s_nop 1")
        a("%s_dpp v%d, v%d, v%d row_ror:4 %s" % (op, x, x, x, full))
        a("v_mov_b32 v%d, v%d" % (y, x))
        a("s_nop 1")
        a("v_permlane16_swap_b32 v%d, v%d" % (x, y))
        a("%s v%d, v%d, v%d" % (op, x, x, y))
        a("v_mov_b32 v%d, v%d" % (y, x))
        a("s_nop 1")
        a("v_permlane32_swap_b32 v%d, v%d" % (x, y))
        a("%s v%d, v%d, v%d" % (op, x, x, y))
    allred("v_max_f32", vT + 4, vH)
    a("v_sub_f32 v%d, v%d, v%d" % (vH, vH, vT + 4))
    a("v_exp_f32 v%d, v%d" % (vH, vH))
    a("s_nop 0")
    a("v_mul_f32 v%d, v%d, v%d" % (vH + 1, vH, vH + 1))
    a("s_nop 1")
    allred("v_add_f32", vT + 4, vH + 1)
    a("v_rcp_f32 v%d, v%d" % (vT + 4, vT + 4))
    a("s_nop 0")
    a("v_mul_f32 v%d, v%d, v%d" % (vH, vH, vT + 4))
    st(9)
    a("L_bp:")
    a("global_load_dwordx4 v[%d:%d], v%d, %s sc1" % (vB, vB + 3, vT + 2, WS))
    a("s_sub_u32 %s, %s, 1" % (sRY, sRY))
    a("s_cbranch_scc1 L_bok")
    a("s_waitcnt vmcnt(%d)" % (NP - 1))
    a("v_max3_u32 v%d, v%d, v%d, v%d" % (vT + 4, vB, vB + 1, vB + 2))
    a("v_max_u32 v%d, v%d, v%d" % (vT + 4, vT + 4, vB + 3))
    a("v_cmp_eq_u32 vcc, -1, v%d" % (vT + 4))
    if masked:
        a("s_and_b64 exec, exec, vcc")
        a("s_cbranch_scc1 L_bp")
        a("L_bok:")
        a("s_mov_b64 exec, -1")
    else:
        a("s_cbranch_vccnz L_bp")
        a("L_bok:")
    st(10)
    for r in (0, 2, 1, 3):
        a("v_mul_f32 v%d, v%d, v%d" % (vA + r, vH, vB + r))
    a("s_cmp_lg_u32 %s, 0" % sCL)
    a("v_permlane32_swap_b32 v%d, v%d" % (vA, vA + 2))
    a("v_permlane32_swap_b32 v%d, v%d" % (vA + 1, vA + 3))
    a("v_add_f32 v%d, v%d, v%d" % (vA, vA, vA + 2))
    a("v_add_f32 v%d, v%d, v%d" % (vA + 1, vA + 1, vA + 3))
    a("s_nop 1")
    a("v_permlane16_swap_b32 v%d, v%d" % (vA, vA + 1))
    a("v_add_f32 v%d, v%d, v%d" % (vA, vA, vA + 1))
    a("s_nop 1")
    a("v_add_f32_dpp v%d, v%d, v%d row_ror:8 %s" % (vA, vA, vA, full))
    a("s_nop 1")
    a("v_add_f32_dpp v%d, v%d, v%d row_ror:4 %s" % (vA, vA, vA, full))
    a("v_cvt_pk_bf16_f32 v%d, v%d, v%d" % (vA, vA, vA))
    st(11)
    a("global_store_short v%d, v%d, %s %s" % (vT + 3, vA, OUT, outpol))
    a("s_cbranch_scc1 L_more")
    a("L_end:")
    if ST: a("s_branch L_diag")
    a("L_exit:")
    a("s_endpgm")
    a("L_more:")
    a("s_max_i32 %s, %s, 64" % (sRY, sRY))
    a("s_ff1_i32_b32 %s, %s" % (sSP, sCL))
    a("s_bitset0_b32 %s, %s" % (sCL, sSP))
    a("s_lshr_b32 %s, %s, 3" % (sT0, sSP))
    a("s_lshl_b32 %s, %s, 3" % (sT0, sT0))
    a("v_add_u32 v%d, %s, v%d" % (vT + 1, sT0, vHa))
    a("global_load_dwordx2 v[%d:%d], v%d, %s sc1" % (vH, vH + 1, vT + 1, WS))
    a("s_waitcnt vmcnt(0)")
    a("s_branch L_col")
    a("L_hr:")
    a("s_sub_u32 %s, %s, 1" % (sRY, sRY))
    a("s_cbranch_scc1 L_hto")
    a("s_cmp_eq_u32 %s, -1" % sDN)
    a("s_cbranch_scc1 L_hl")
    a("s_lshl_b32 %s, %s, 4" % (sT0, sH))
    a("v_mov_b32 v%d, %s" % (vT + 4, sT0))
    a("global_load_dword v%d, v%d, %s offset:4 sc1" % (vT + 4, vT + 4, DBG))
    a("s_waitcnt vmcnt(0)")
    a("v_readfirstlane_b32 %s, v%d" % (sT0, vT + 4))
    a("s_nop 0")
    a("s_andn2_b32 %s, %s, %s" % (sT0, sT0, sDN))
    a("s_cbranch_scc0 L_hl")
    a("s_ff1_i32_b32 %s, %s" % (sT0, sT0))
    a("s_bitset1_b32 %s, %s" % (sDN, sT0))
    a("s_bitset1_b32 %s, %s" % (sCL, sT0))
    a("s_add_u32 %s, %s, %s" % (sT0, sT0, sCH))
    a("s_lshl_b32 %s, %s, 10" % (sT1, sT0))
    a("v_add_u32 v%d, %s, v%d" % (vT + 4, sT1, vLin))
    a("s_lshl_b32 %s, %s, 4" % (sT1, sT0))
    a("s_add_u32 %s, %s, 0x%x" % (sT1, sT1, HDR))
    a("v_mov_b32 v%d, %s" % (vT + 5, sT1))
    a("v_add_u32 v%d, 0x%x, v%d" % (vT + 6, SLOW, vT + 4))
    a("v_add_u32 v%d, 0x%x, v%d" % (vT + 7, SLOW, vT + 5))
    a("global_load_dwordx4 v[%d:%d], v%d, %s sc1" % (vB + 4, vB + 7, vT + 6, WS))
    a("global_load_dwordx4 v[%d:%d], v%d, %s sc1" % (vB + 8, vB + 11, vT + 7, WS))
    a("s_waitcnt vmcnt(0)")
    a("global_store_dwordx4 v%d, v[%d:%d], %s" % (vT + 4, vB + 4, vB + 7, WS))
    a("s_waitcnt vmcnt(0)")
    a("global_store_dwordx4 v%d, v[%d:%d], %s" % (vT + 5, vB + 8, vB + 11, WS))
    a("L_hl:")
    a("global_load_dwordx2 v[%d:%d], v%d, %s sc1" % (vH, vH + 1, vT + 1, WS))
    a("s_waitcnt vmcnt(0)")
    a("s_branch L_hc")
    a("L_hto:")
    a("s_mov_b32 %s, 64" % sRY)
    a("s_branch L_hok")

    a("L_fin:")
    if fprio: a("s_setprio %d" % fprio)
    a("s_waitcnt lgkmcnt(0)")
    a("v_readfirstlane_b32 %s, v%d" % (sFL, t0))
    a("s_barrier")
    st(12)
    F.done = 15
    for i in range(32 - late, 32): F.issue(i)
    a("ds_read_b128 v[%d:%d], v%d offset:%d" % (vA, vA + 3, vLin, 7 * 1024))
    a("s_cmp_eq_u32 %s, 0" % sFL)
    a("s_waitcnt lgkmcnt(0)")
    k = 0
    while k < G - late:
        F.wait(G + k); pv(k, False); k += 1
    def add2(d, x, y):
        if pk: a("v_pk_add_f32 v[%d:%d], v[%d:%d], v[%d:%d]" % (d, d + 1, x, x + 1, y, y + 1))
        else:
            a("v_add_f32 v%d, v%d, v%d" % (d, x, y)); a("v_add_f32 v%d, v%d, v%d" % (d + 1, x + 1, y + 1))
    if two:
        q = lambda w: vX + 4 * w
        def padd(d, x, y): add2(d, x, y); add2(d + 2, x + 2, y + 2)
        a("s_barrier")
        for w in range(4):
            a("ds_read_b128 v[%d:%d], v%d offset:%d" % (q(w), q(w) + 3, vLin, w * 1024))
        a("s_waitcnt lgkmcnt(2)"); padd(q(0), q(0), q(1))
        a("s_waitcnt lgkmcnt(0)"); padd(q(2), q(2), q(3))
        padd(q(0), q(0), q(2))
        for _ in range(na):
            F.wait(G + k); pv(k, False); k += 1
        a("s_barrier")
        st(6)
        for w in range(4, 7):
            a("ds_read_b128 v[%d:%d], v%d offset:%d" % (q(w), q(w) + 3, vLin, w * 1024))
        for _ in range(nb):
            if k < G: F.wait(G + k); pv(k, False); k += 1
        a("s_waitcnt lgkmcnt(0)")
        todo = [(q(0), q(0), q(4)), (q(0) + 2, q(0) + 2, q(4) + 2), (q(5), q(5), q(6)), (q(5) + 2, q(5) + 2, q(6) + 2),
                (q(0), q(0), q(5)), (q(0) + 2, q(0) + 2, q(5) + 2)]
        while k < G:
            n = -(-len(todo) // (G - k))
            for _ in range(max(n, min(2, len(todo)))): add2(*todo.pop(0))
            F.wait(G + k); pv(k, False); k += 1
        for x in todo: add2(*x)
        st(5)
        a("s_nop 7")
        add2(vA, vA, q(0)); add2(vA + 2, vA + 2, q(0) + 2)
        a("s_cbranch_scc1 L_bs")
        a("global_store_dwordx4 v%d, v[%d:%d], %s" % (vSt, vA, vA + 3, WS))
    else:
        a("s_barrier")
        st(6)
        for w in range(7):
            a("ds_read_b128 v[%d:%d], v%d offset:%d" % (vX + 4 * w, vX + 4 * w + 3, vLin, w * 1024))
        for _ in range(npre):
            F.wait(G + k); pv(k, False); k += 1
        def padd(d, x, y):
            a("v_pk_add_f32 v[%d:%d], v[%d:%d], v[%d:%d]" % (d, d + 1, x, x + 1, y, y + 1))
            a("v_pk_add_f32 v[%d:%d], v[%d:%d], v[%d:%d]" % (d + 2, d + 3, x + 2, x + 3, y + 2, y + 3))
        q = lambda w: vX + 4 * w
        a("s_waitcnt lgkmcnt(5)"); padd(q(0), q(0), q(1))
        a("s_waitcnt lgkmcnt(3)"); padd(q(2), q(2), q(3))
        a("s_waitcnt lgkmcnt(1)"); padd(q(4), q(4), q(5))
        padd(q(0), q(0), q(2))
        a("s_waitcnt lgkmcnt(0)"); padd(q(4), q(4), q(6))
        padd(q(0), q(0), q(4))
        padd(vA, vA, q(0))
        a("s_nop 0")
        while k < G:
            F.wait(G + k); pv(k, False); k += 1
        st(5)
        a("s_cbranch_scc1 L_bs")
        a("s_nop 6")
        a("global_store_dwordx4 v%d, v[%d:%d], %s" % (vSt, vA, vA + 3, WS))
    st(7)
    if ST: a("s_branch L_diag")
    a("s_endpgm")
    a("L_bs:")
    a("v_add_u32 v%d, 0x%x, v%d" % (vSt, SLOW, vSt))
    a("s_lshl_b32 %s, 1, %s" % (sT0, sSP))
    a("s_lshl_b32 %s, %s, 4" % (sT1, sH))
    a("v_mov_b32 v2, %s" % sT0)
    a("v_mov_b32 v3, %s" % sT1)
    a("s_nop 2")
    a("global_store_dwordx4 v%d, v[%d:%d], %s sc1" % (vSt, vA, vA + 3, WS))
    a("s_waitcnt vmcnt(0)")
    a("s_mov_b64 exec, 1")
    a("global_atomic_or v3, v2, %s offset:4 sc1" % DBG)
    a("s_branch L_end")

    a("L_helper:")
    if hprio: a("s_setprio %d" % hprio)
    a("s_load_dwordx8 s[12:19], s[0:1], 32")
    a("s_load_dwordx2 s[20:21], s[0:1], 64")
    a("v_and_b32 v1, 63, v0")
    a("s_lshr_b32 %s, %s, 4" % (sH, sCH))
    a("s_and_b32 %s, %s, 15" % (sSP, sCH))
    a("v_lshlrev_b32 v4, 4, v1")
    a("v_lshrrev_b32 v10, 5, v1")
    a("s_getreg_b32 %s, hwreg(HW_REG_XCC_ID, 0, 4)" % sIN)
    a("s_add_u32 %s, %s, 1" % (sIN, sIN))
    a("s_lshl_b32 %s, %s, 4" % (sT0, sH))
    a("v_mov_b32 v18, %s" % sT0)
    for i in range(4): a("v_mov_b32 v%d, -1" % (44 + i))
    for i in range(4): a("v_mov_b32 v%d, 0" % (24 + i))
    a("v_mov_b32 v20, 0xff7fffff")
    a("v_mov_b32 v19, %s" % sIN)
    a("s_lshl_b32 %s, %s, 8" % (sT1, sH))
    a("s_cmp_lg_u32 %s, 0" % sSP)
    a("s_waitcnt lgkmcnt(0)")
    st(1)
    a("s_cbranch_scc1 L_np")
    a("s_add_u32 %s, %s, 0x%x" % (sT0, sT1, HDR))
    a("v_lshl_add_u32 v11, v1, 2, %s" % sT0)
    a("global_store_dword v11, v44, %s" % WS)
    a("s_waitcnt vmcnt(0)")
    a("s_mov_b64 exec, 1")
    a("global_store_dword v18, v19, %s sc1" % DBG)
    a("s_mov_b64 exec, -1")
    a("global_load_dword v52, v11, %s sc1" % WS)
    a("L_np:")
    st(2)
    a("s_cmp_lg_u32 %s, %d" % (sSP, treesp))
    a("s_cbranch_scc1 L_nt")
    a("s_load_dword %s, %s, 0" % (sMK, MK))
    a("v_or_b32 v11, %s, v5" % sT1)
    a("global_load_dwordx4 v[36:39], v11, %s" % KT)
    a("v_bfe_u32 v12, v1, 3, 1")
    a("v_lshl_add_u32 v11, v12, 8, v11")
    a("v_add_u32 v11, %s, v11" % sT1)
    a("global_load_dwordx4 v[40:43], v11, %s" % QS)
    a("v_and_b32 v11, 15, v1")
    a("v_bfe_u32 v12, v1, 4, 1")
    a("v_lshl_add_u32 v11, v11, 1, v12")
    a("v_lshl_add_u32 v11, v11, 3, %s" % sT1)
    a("global_load_dwordx2 v[28:29], v11, %s" % VT)
    a("s_mov_b32 %s, 0x%08x" % (sC, f2u(C_QK)))
    a("s_waitcnt vmcnt(0) lgkmcnt(0)")
    a("v_mfma_f32_16x16x32_bf16 v[32:35], v[36:39], v[40:43], 0")
    a("s_lshl_b32 %s, %s, 16" % (sMK, sMK))
    a("v_sub_f32 v11, 1.0, %s" % sMK)
    a("v_mul_f32 v11, 0x%08x, v11" % f2u(C_MASK))
    a("v_lshlrev_b32 v24, 16, v28")
    a("v_and_b32 v25, 0xffff0000, v28")
    a("v_lshlrev_b32 v26, 16, v29")
    a("v_and_b32 v27, 0xffff0000, v29")
    a("v_cmp_gt_u32 vcc, 32, v1")
    a("v_add_f32_dpp v33, v32, v33 %s" % dpp(0))
    a("v_add_f32_dpp v35, v34, v35 %s" % dpp(2))
    a("s_nop 0")
    a("v_add_f32_dpp v32, v33, v35 %s" % dpp(1))
    a("v_fma_f32 v32, v32, %s, v11" % sC)
    a("s_nop 1")
    a("v_mov_b32_dpp v33, v32 row_newbcast:3 %s" % full)
    a("v_mov_b32_dpp v34, v32 row_newbcast:11 %s" % full)
    a("v_cndmask_b32 v20, v34, v33, vcc")
    a("L_nt:")
    a("v_lshlrev_b32 v6, 6, v10")
    a("ds_write_b32 v6, v20 offset:%d" % (LM + 32))
    a("v_and_b32 v7, 7, v1")
    a("v_lshl_add_u32 v7, v7, 2, v6")
    a("s_mov_b32 %s, %d" % (sT1, tries - 1))
    a("s_waitcnt vmcnt(0) lgkmcnt(0)")
    a("s_barrier")
    a("global_load_dword v19, v18, %s sc1" % DBG)
    if touch:
        a("s_lshl_b32 %s, %s, 5" % (sT0, sCH))
        a("v_mov_b32 v11, %s" % sT0)
        a("global_load_dword v52, v11, %s" % OUT)
    a("s_barrier")
    a("ds_read_b32 v14, v7 offset:%d" % LM)
    a("L_fl:")
    a("s_waitcnt vmcnt(0)")
    a("v_readfirstlane_b32 %s, v19" % sT0)
    a("s_nop 0")
    a("s_cmp_lg_u32 %s, 0" % sT0)
    a("s_cbranch_scc1 L_fl2")
    a("s_sub_u32 %s, %s, 1" % (sT1, sT1))
    a("s_cbranch_scc1 L_fl2")
    a("global_load_dword v19, v18, %s sc1" % DBG)
    a("s_branch L_fl")
    a("L_fl2:")
    a("s_cmp_eq_u32 %s, %s" % (sT0, sIN))
    a("s_cselect_b32 %s, %d, 0" % (sFL, 1 if fast else 0))
    if slowsel is not None:
        a("s_lshr_b32 %s, 0x%x, %s" % (sT0, slowsel, sSP))
        a("s_andn2_b32 %s, %s, %s" % (sFL, sFL, sT0))
    a("s_cmp_eq_u32 %s, 0" % sSP)
    a("s_cselect_b32 %s, 1, %s" % (sFL, sFL))
    st(3)
    a("v_mov_b32 v12, %s" % sFL)
    a("v_mov_b32 v13, 0")
    a("ds_write_b32 v13, v12 offset:%d" % LROLE)
    a("s_lshl_b32 %s, %s, 10" % (sT0, sCH))
    a("v_add_u32 v11, %s, v4" % sT0)
    a("s_cmp_eq_u32 %s, 0" % sFL)
    a("s_cbranch_scc1 L_nomk")
    a("global_store_dwordx4 v11, v[44:47], %s" % WS)
    a("global_load_dwordx4 v[48:51], v11, %s sc1" % WS)
    a("L_nomk:")
    def rowred(op, dst, src, steps):
        cur = src
        for s in steps:
            a("s_nop 1")
            a("%s_dpp v%d, v%d, v%d row_ror:%d %s" % (op, dst, cur, cur, s, full))
            cur = dst
    a("s_waitcnt lgkmcnt(0)")
    a("v_max_f32 v14, v14, v20")
    rowred("v_max_f32", 16, 14, (1, 2, 4))
    a("v_sub_f32 v20, v20, v16")
    a("v_exp_f32 v20, v20")
    a("s_lshl_b32 %s, %s, 4" % (sT0, sCH))
    a("s_add_u32 %s, %s, 0x%x" % (sT0, sT0, HDR))
    for i in range(4): a("v_mul_f32 v%d, v20, v%d" % (24 + i, 24 + i))
    a("ds_write_b128 v4, v[24:27] offset:%d" % (7 * 1024))
    a("v_lshl_add_u32 v13, v10, 3, %s" % sT0)
    a("s_waitcnt lgkmcnt(0)")
    st(4)
    a("s_barrier")
    a("ds_read_b32 v15, v7 offset:%d" % LL)
    a("s_cmp_eq_u32 %s, 0" % sFL)
    a("s_waitcnt lgkmcnt(0)")
    rowred("v_add_f32", 17, 15, (1, 2, 4))
    a("v_add_f32 v17, v17, v20")
    a("s_waitcnt vmcnt(0)")
    a("s_cbranch_scc1 L_hs")
    a("global_store_dwordx2 v13, v[16:17], %s" % WS)
    st(5)
    a("s_branch L_he")
    a("L_hs:")
    a("v_add_u32 v13, 0x%x, v13" % SLOW)
    a("global_store_dwordx2 v13, v[16:17], %s sc1" % WS)
    a("s_waitcnt vmcnt(0)")
    a("L_he:")
    if hbar and not ST: a("s_barrier")
    if ST:
        a("s_barrier"); a("s_barrier")
        if two: a("s_barrier")
        a("L_diag:")
        a("s_mov_b64 exec, -1")
        if ST == "st": st0.dump(sW, NW + 1, WS)
        else: st0.encode(int(ST), k=enc_k)
    a("s_endpgm")
    return wrap(a.text(), NWG, (NW + 1) * 64, LDS, nv, nsgpr=96)

if __name__ == "__main__":
    kw = {}
    for x in sys.argv[1:]:
        k, v = x.split("=")
        try: v = eval(v)
        except: pass
        kw[k] = v
    if "ST" in kw and kw["ST"] != "st": kw["ST"] = str(kw["ST"])
    sys.stdout.write(gen(**kw))
```

```python
import sys
from common import *

def gen(ST=False, pol="nt", D=4, DV=None, B0=15, fast=1, touch=1, outpol="", stamps=None, enc_k=10, tries=4, slowsel=None,
        hprio=0, wb=(3, 2, 4), cg=(1, 2, 32, 64), brk=1, NP=3, late=16, EB=31, npre=4, treesp=1, masked=0, fprio=0, RY=0x400000, hbar=1, lin=1, early=1, two=0, na=6, nb=4, pk=1, b1pos=12, qpos=None, ex=0, fd=None, vt=0, wt=0, probe=None):
    NW, G, NWG, BL = 8, 16, 256, 4
    DV = DV or [D] * 28 + [D - 1] * 4
    a = Asm()
    st0 = Stamps(a, ST, base=64)
    def st(i):
        if stamps is None or i in stamps: st0(i)
    QS, KS, VS, KT = "s[4:5]", "s[6:7]", "s[8:9]", "s[10:11]"
    VT, MK, OUT, DBG, WS = "s[12:13]", "s[14:15]", "s[16:17]", "s[18:19]", "s[20:21]"
    sW, sH, sSP, sC, sIN, sFL, sT0, sT1, sCH = "s28", "s29", "s30", "s31", "s32", "s33", "s34", "s35", "s36"
    sMK, sDN, sRY, sCL, sCO = "s37", "s38", "s39", "s40", "s41"
    vKo, vVo = 2, 3
    vLin, vSt, vMw, vMr = 4, 5, 6, 7
    vA = 8
    vX = 12
    vHa, vBa, vOa = 12, 13, 14
    vH = 16
    vM = 20
    vT = 24
    vP = 32
    vS = 40
    vQ0, vQ1 = 72, 76
    vD = 104
    nv = 168
    dpp = lambda p: "quad_perm:[%d,%d,%d,%d] row_mask:0xf bank_mask:0xf" % (p, p, p, p)
    full = "row_mask:0xf bank_mask:0xf"
    LM = 8192
    LL = LM + 128
    LROLE = LL + 128
    LDS = LROLE + 16
    HDR = 0x40000
    SLOW = 0x80000

    a("s_load_dwordx8 s[4:11], s[0:1], 0")
    st0.init()
    a("s_cmp_ge_u32 s2, %d" % NWG)
    a("s_cbranch_scc1 L_exit")
    a("v_lshrrev_b32 v4, 6, v0")
    a("v_and_b32 v2, 3, v0")
    a("s_and_b32 %s, s2, 7" % sT0)
    a("v_readfirstlane_b32 %s, v4" % sW)
    a("s_lshr_b32 %s, s2, 3" % sT1)
    a("s_lshl_b32 %s, %s, 5" % (sT0, sT0))
    a("s_or_b32 %s, %s, %s" % (sCH, sT0, sT1))
    a("s_lshl_b32 %s, %s, 17" % (sT0, sCH))
    a("v_bfe_u32 v5, v0, 4, 2")
    a("v_lshlrev_b32 v2, 4, v2")
    a("v_lshl_or_b32 v5, v5, 6, v2")
    a("v_bfe_u32 v6, v0, 2, 2")
    if tuple(wb) == (wb[0], wb[0] + 1, wb[0] + 2):
        a("v_lshl_or_b32 v3, v4, %d, %s" % (wb[0] + 10, sT0))
    else:
        a("v_bfe_u32 v7, v0, 6, 1"); a("v_lshl_or_b32 v3, v7, %d, %s" % (wb[0] + 10, sT0))
        a("v_bfe_u32 v7, v0, 7, 1"); a("v_lshl_or_b32 v3, v7, %d, v3" % (wb[1] + 10))
        a("v_bfe_u32 v7, v0, 8, 1"); a("v_lshl_or_b32 v3, v7, %d, v3" % (wb[2] + 10))
    a("v_lshl_or_b32 v2, v6, 8, v5")
    a("s_cmp_eq_u32 %s, 8" % sW)
    a("v_or_b32 v%d, v2, v3" % vKo)
    a("s_cbranch_scc1 L_helper")
    a("s_waitcnt lgkmcnt(0)")
    st(1)
    def gx(g):
        x = 0
        for k in range(4):
            if g >> k & 1: x ^= cg[k]
        return x << 10
    immmask = 0
    for b in (0, 1):
        if b not in wb: immmask |= 1024 << b
    class Stream:
        def __init__(s): s.cur = {vKo: 0, vVo: 0}; s.ops = []; s.done = -1
        def copy(s):
            t = Stream(); t.cur = dict(s.cur); t.ops = list(s.ops); t.done = s.done; return t
        def issue(s, i):
            g = i % G
            vo, base = (vKo, KS) if i < G else (vVo, VS)
            x = gx(g); hi = x & ~immmask
            if hi != s.cur[vo]:
                a("v_xor_b32 v%d, 0x%x, v%d" % (vo, hi ^ s.cur[vo], vo)); s.cur[vo] = hi
            a("global_load_dwordx4 v[%d:%d], v%d, %s offset:%d %s" % (vD + 4 * g, vD + 4 * g + 3, vo, base, x & immmask, pol))
            s.ops.append(i)
        def wait(s, x):
            if x > s.done:
                a("s_waitcnt vmcnt(%d)" % (len(s.ops) - 1 - s.ops.index(x))); s.done = x
                return True
            return False
        def slot(s, i):
            if not (i - DV[i] >= 0 and s.wait(i - DV[i])) and brk and i: a("s_nop 0")
            s.issue(i)
    S = Stream()
    def qloads():
        a("s_load_dwordx8 s[12:19], s[0:1], 32")
        a("s_load_dwordx2 s[20:21], s[0:1], 64")
        a("s_lshr_b32 %s, %s, 4" % (sH, sCH))
        a("v_bfe_u32 v6, v0, 3, 1")
        a("v_lshl_or_b32 v7, v6, 8, v5")
        a("s_lshl_b32 %s, %s, 9" % (sT1, sH))
        a("v_or_b32 v7, %s, v7" % sT1)
        for i in range(8): a("v_mov_b32 v%d, 0" % (vQ0 + i))
        a("s_mov_b32 s22, 0x0f0f0f0f"); a("s_mov_b32 s23, s22")
        a("s_mov_b64 exec, s[22:23]")
        a("global_load_dwordx4 v[%d:%d], v7, %s" % (vQ0, vQ0 + 3, QS))
        a("s_not_b64 exec, exec")
        a("global_load_dwordx4 v[%d:%d], v7, %s" % (vQ1, vQ1 + 3, QS))
        a("s_mov_b64 exec, -1")
        S.ops.extend(["Q0", "Q1"])
        if vt & 2:
            a("s_mov_b64 exec, 1")
            a("global_load_dword v%d, v3, %s nt" % (vH + 2, VS))
            a("s_mov_b64 exec, -1")
            S.ops.append("VT")
    def consts():
        t = vT
        a("v_and_b32 v1, 63, v0")
        a("v_lshlrev_b32 v%d, 4, v1" % vLin)
        a("v_or_b32 v%d, v%d, v3" % (vVo, vLin))
        a("v_lshlrev_b32 v%d, 6, v6" % vMr)
        a("s_lshl_b32 %s, %s, 2" % (sT0, sW))
        a("v_add_u32 v%d, %s, v%d" % (vMw, sT0, vMr))
        a("s_and_b32 %s, %s, 15" % (sSP, sCH))
        a("v_lshrrev_b32 v%d, 5, v1" % t)
        a("v_bfe_u32 v%d, v1, 4, 1" % (t + 1))
        a("s_lshl_b32 %s, %s, 10" % (sT0, sCH))
        if lin:
            a("v_add_u32 v%d, %s, v%d" % (vSt, sT0, vLin))
        else:
            a("v_and_b32 v%d, 15, v1" % (t + 2))
            a("v_lshl_add_u32 v%d, v%d, 5, v%d" % (t + 3, t, t + 1))
            a("v_lshl_add_u32 v%d, v%d, 1, v%d" % (t + 3, t + 2, t + 3))
            a("v_lshl_add_u32 v%d, v%d, 4, %s" % (vSt, t + 3, sT0))
        a("v_lshrrev_b32 v%d, 2, v1" % (t + 2))
        a("v_and_b32 v%d, 3, v1" % (t + 3))
        a("s_lshl_b32 %s, %s, 14" % (sCO, sH))
        a("v_lshl_add_u32 v%d, v%d, 10, %s" % (vBa, t + 2, sCO))
        a("v_lshl_add_u32 v%d, v%d, 4, v%d" % (vBa, t + 3, vBa))
        a("s_lshl_b32 %s, %s, 8" % (sT0, sH))
        a("s_add_u32 %s, %s, 0x%x" % (sT0, sT0, HDR))
        a("v_lshl_add_u32 v%d, v%d, 4, %s" % (vHa, t + 2, sT0))
        a("v_lshl_add_u32 v%d, v%d, 1, v%d" % (t, t, t + 1))
        a("v_lshl_add_u32 v%d, v%d, %d, v%d" % (t, t + 3, 3 if lin else 2, t))
        a("v_lshl_add_u32 v%d, v%d, 1, %s" % (vOa, t, sT1))
        a("s_mov_b32 %s, 0x%08x" % (sC, f2u(C_QK)))
        a("v_and_b32 v%d, 1, v1" % t)
        a("v_lshlrev_b32 v%d, 4, v%d" % (t, t))
        a("v_mov_b32 v%d, 0xffff" % (t + 1))
        a("v_lshlrev_b32 v%d, v%d, v%d" % (t, t, t + 1))
        a("v_bfe_u32 v%d, v1, 1, 2" % (t + 1))
        for i in range(4):
            a("v_cmp_eq_u32 vcc, %d, v%d" % (i, t + 1))
            a("s_nop 1")
            a("v_cndmask_b32 v%d, 0, v%d, vcc" % (vM + i, t))
    def qk(g):
        d = vS + 4 * (g // 2)
        q = (vQ0, vQ1)[g & 1]
        a("v_mfma_f32_16x16x32_bf16 v[%d:%d], v[%d:%d], v[%d:%d], %s" % (d, d + 3, vD + 4 * g, vD + 4 * g + 3, q, q + 3,
            "0" if g % 2 == 0 else "v[%d:%d]" % (d, d + 3)))
    t0, t1, t2 = vT, vT + 1, vT + 2
    P = G // 2
    def soft1():
        for p in range(P):
            b = vS + 4 * p
            a("v_add_f32_dpp v%d, v%d, v%d %s" % (b + 1, b, b + 1, dpp(0)))
            a("v_add_f32_dpp v%d, v%d, v%d %s" % (b + 3, b + 2, b + 3, dpp(2)))
        for p in range(P):
            b = vS + 4 * p
            a("v_add_f32_dpp v%d, v%d, v%d %s" % (b, b + 1, b + 3, dpp(1)))
        a("v_max3_f32 v%d, v%d, v%d, v%d" % (t0, vS, vS + 4, vS + 8))
        a("v_max3_f32 v%d, v%d, v%d, v%d" % (t1, vS + 12, vS + 16, vS + 20))
        a("v_max3_f32 v%d, v%d, v%d, v%d" % (t0, t0, vS + 24, vS + 28))
        a("v_max_f32 v%d, v%d, v%d" % (t0, t0, t1))
        a("v_mov_b32 v%d, v%d" % (t1, t0))
        a("s_nop 1")
        a("v_permlane32_swap_b32 v%d, v%d" % (t0, t1))
        a("v_max_f32 v%d, v%d, v%d" % (t0, t0, t1))
        a("v_mov_b32 v%d, v%d" % (t1, t0))
        a("s_nop 1")
        a("v_permlane16_swap_b32 v%d, v%d" % (t0, t1))
        a("v_max_f32 v%d, v%d, v%d" % (t0, t0, t1))
        a("s_nop 1")
        a("v_mov_b32_dpp v%d, v%d %s" % (t1, t0, dpp(3)))
        a("s_nop 1")
        a("v_max_f32_dpp v%d, v%d, v%d row_half_mirror %s" % (t0, t1, t1, full))
        a("v_mul_f32 v%d, %s, v%d" % (t0, sC, t0))
        a("ds_write_b32 v%d, v%d offset:%d" % (vMw, t0, LM))
        a("s_waitcnt lgkmcnt(0)")
        a("s_barrier")
        a("ds_read_b128 v[%d:%d], v%d offset:%d" % (vT, vT + 3, vMr, LM))
        a("ds_read_b128 v[%d:%d], v%d offset:%d" % (vT + 4, vT + 7, vMr, LM + 16))
        a("ds_read_b32 v%d, v%d offset:%d" % (vP, vMr, LM + 32))
    def soft2():
        a("s_waitcnt lgkmcnt(0)")
        a("v_max3_f32 v%d, v%d, v%d, v%d" % (t0, vT, vT + 1, vT + 2))
        a("v_max3_f32 v%d, v%d, v%d, v%d" % (vT + 3, vT + 3, vT + 4, vT + 5))
        a("v_max3_f32 v%d, v%d, v%d, v%d" % (t0, t0, vT + 6, vT + 7))
        a("v_max3_f32 v%d, v%d, v%d, v%d" % (t0, t0, vT + 3, vP))
        for p in range(P):
            b = vS + 4 * p
            a("v_fma_f32 v%d, v%d, %s, -v%d" % (b, b, sC, t0))
        for p in range(P):
            b = vS + 4 * p
            a("v_exp_f32_dpp v%d, v%d %s" % (b + 1, b, dpp(3)))
        a("v_add_f32 v%d, v%d, v%d" % (t1, vS + 1, vS + 5))
        for p in range(2, P):
            a("v_add_f32 v%d, v%d, v%d" % (t1, t1, vS + 4 * p + 1))
        cv = lambda p: a("v_cvt_pk_bf16_f32 v%d, v%d, v%d" % (vP + p, vS + 4 * p + 1, vS + 4 * p + 1))
        a("v_mov_b32 v%d, v%d" % (t2, t1))
        cv(0); cv(1)
        a("v_permlane32_swap_b32 v%d, v%d" % (t1, t2))
        a("v_add_f32 v%d, v%d, v%d" % (t1, t1, t2))
        a("v_mov_b32 v%d, v%d" % (t2, t1))
        cv(2); cv(3)
        a("v_permlane16_swap_b32 v%d, v%d" % (t1, t2))
        a("v_add_f32 v%d, v%d, v%d" % (t2, t1, t2))
        cv(4); cv(5)
        a("v_add_f32_dpp v%d, v%d, v%d row_half_mirror %s" % (t1, t2, t2, full))
        cv(6); cv(7)
        a("ds_write_b32 v%d, v%d offset:%d" % (vMw, t1, LL))
    def ands(g):
        src = vP + g // 2
        dst = vS + 4 * g
        for i in range(4):
            if (i >> 1) == (g & 1): a("v_and_b32 v%d, v%d, v%d" % (dst + i, src, vM + i))
            else: a("v_and_b32_dpp v%d, v%d, v%d row_half_mirror %s" % (dst + i, src, vM + i, full))
    def pv(g, zero):
        s = vS + 4 * g
        a("v_mfma_f32_16x16x32_bf16 v[%d:%d], v[%d:%d], v[%d:%d], %s" % (vA, vA + 3, s, s + 3, vD + 4 * g, vD + 4 * g + 3,
            "0" if zero else "v[%d:%d]" % (vA, vA + 3)))

    nqk = 0
    for i in range(G):
        if i == (qpos or D):
            qloads(); consts(); st(2)
        S.slot(i)
        if probe == "k0" and i == 0:
            a("s_cmp_lg_u32 %s, 0" % sW); a("s_cbranch_scc1 L_pr"); a("s_waitcnt vmcnt(0)"); st0(6); a("L_pr:")
        if (i + 1) % BL == 0:
            qdone = "Q1" in S.ops and S.done >= 0 and S.ops.index(S.done) > S.ops.index("Q1")
            while qdone and nqk <= S.done:
                qk(nqk); nqk += 1
        if i == B0: a("s_barrier")
    assert late in (12, 16)
    if late == 16:
        F = S.copy()
        a("s_cmp_eq_u32 %s, 7" % sW)
        a("s_cbranch_scc1 L_k7")
    for i in range(16, 20):
        assert nqk > i - G
        S.slot(i)
    S.wait(15)
    if late == 16:
        a("s_branch L_k8")
        a("L_k7:")
        a("s_waitcnt vmcnt(0)")
        a("L_k8:")
    else:
        F = S.copy()
    while nqk < G:
        qk(nqk); nqk += 1
    st(3)
    soft1()
    a("s_cmp_eq_u32 %s, 7" % sW)
    a("s_cbranch_scc1 L_s2")
    for i in range(20, 24): S.slot(i)
    a("L_s2:")
    soft2()
    for g in range(G): ands(g)
    a("s_waitcnt lgkmcnt(0)")
    st(4)
    a("s_barrier")
    a("v_mov_b32 v%d, 0" % t0)
    a("ds_read_b32 v%d, v%d offset:%d" % (t0, t0, LROLE))
    a("s_cbranch_scc1 L_fin")
    npv = 0
    for i in range(24, 32):
        S.slot(i)
        if i == EB and EB < 31: a("s_barrier")
        if (i + 1) % BL == 0 and i < 31:
            while npv + G <= S.done:
                pv(npv, npv == 0); npv += 1
    if ex:
        a("s_cmp_lg_u32 %s, 1" % sW)
        a("s_cbranch_scc1 L_ex")
        a("s_waitcnt vmcnt(%d)" % (4 - ex))
        a("L_ex:")
    a("s_cmp_lg_u32 %s, 0" % sW)
    a("s_cbranch_scc1 L_nh")
    a("s_lshr_b32 %s, %s, 3" % (sT0, sSP))
    a("s_lshl_b32 %s, %s, 3" % (sT0, sT0))
    a("v_add_u32 v%d, %s, v%d" % (vT + 1, sT0, vHa))
    a("global_load_dwordx2 v[%d:%d], v%d, %s sc1" % (vH, vH + 1, vT + 1, WS))
    a("L_nh:")
    if EB == 31: a("s_barrier")
    st(12)
    a("s_lshl_b32 %s, %s, 10" % (sT0, sW))
    a("v_add_u32 v%d, %s, v%d" % (vT + 2, sT0, vLin))
    while npv < G:
        if two and npv == b1pos:
            a("s_cmp_lt_u32 %s, 4" % sW)
            a("s_cbranch_scc1 L_b1")
            a("s_barrier")
            a("L_b1:")
        S.wait(npv + G)
        pv(npv, npv == 0); npv += 1
    st(5)
    a("s_waitcnt lgkmcnt(0)")
    a("v_readfirstlane_b32 %s, v%d" % (sFL, t0))
    a("s_nop 5")
    a("ds_write_b128 v%d, v[%d:%d]" % (vT + 2, vA, vA + 3))
    if two:
        a("s_waitcnt lgkmcnt(0)")
        a("s_barrier")
        a("s_cbranch_scc0 L_end")
        a("s_cmp_eq_u32 %s, 0" % sW)
        a("s_cselect_b32 %s, %s, 0" % (sFL, sFL))
        a("s_cmp_eq_u32 %s, 0" % sFL)
        a("s_barrier")
    else:
        a("s_cmp_eq_u32 %s, 0" % sW)
        a("s_cselect_b32 %s, %s, 0" % (sFL, sFL))
        a("s_cmp_eq_u32 %s, 0" % sFL)
        a("s_waitcnt lgkmcnt(0)")
        a("s_barrier")
    a("s_cbranch_scc1 L_end")
    vB = vS
    a("s_mov_b32 %s, 0" % sCL)
    a("s_cmp_eq_u32 %s, 0" % sSP)
    a("s_cselect_b32 %s, 0, -1" % sDN)
    a("s_mov_b32 %s, 0x%x" % (sRY, RY))
    a("L_col:")
    a("s_lshl_b32 %s, %s, 6" % (sT0, sSP))
    a("v_add_u32 v%d, %s, v%d" % (vT + 2, sT0, vBa))
    if lin:
        a("s_and_b32 %s, %s, 0xc0" % (sT0, sT0))
        a("s_mul_i32 %s, %s, 34" % (sT1, sSP))
        a("s_and_b32 %s, %s, 0x108" % (sT1, sT1))
        a("s_or_b32 %s, %s, %s" % (sT0, sT0, sT1))
    else:
        a("s_lshl_b32 %s, %s, 5" % (sT0, sSP))
    a("v_add_u32 v%d, %s, v%d" % (vT + 3, sT0, vOa))
    for r in range(4): a("v_mov_b32 v%d, -1" % (vB + r))
    a("L_hc:")
    a("v_max_u32 v%d, v%d, v%d" % (vT + 4, vH, vH + 1))
    a("v_cmp_eq_u32 vcc, -1, v%d" % (vT + 4))
    a("s_cbranch_vccnz L_hr")
    a("L_hok:")
    st(8)
    if early: a("global_load_dwordx4 v[%d:%d], v%d, %s sc1" % (vB, vB + 3, vT + 2, WS))
    def allred(op, x, src):
        y = x + 1
        a("%s_dpp v%d, v%d, v%d row_ror:8 %s" % (op, x, src, src, full))
        a("s_nop 1")
        a("%s_dpp v%d, v%d, v%d row_ror:4 %s" % (op, x, x, x, full))
        a("v_mov_b32 v%d, v%d" % (y, x))
        a("s_nop 1")
        a("v_permlane16_swap_b32 v%d, v%d" % (x, y))
        a("%s v%d, v%d, v%d" % (op, x, x, y))
        a("v_mov_b32 v%d, v%d" % (y, x))
        a("s_nop 1")
        a("v_permlane32_swap_b32 v%d, v%d" % (x, y))
        a("%s v%d, v%d, v%d" % (op, x, x, y))
    allred("v_max_f32", vT + 4, vH)
    a("v_sub_f32 v%d, v%d, v%d" % (vH, vH, vT + 4))
    a("v_exp_f32 v%d, v%d" % (vH, vH))
    a("s_nop 0")
    a("v_mul_f32 v%d, v%d, v%d" % (vH + 1, vH, vH + 1))
    a("s_nop 1")
    allred("v_add_f32", vT + 4, vH + 1)
    a("v_rcp_f32 v%d, v%d" % (vT + 4, vT + 4))
    a("s_nop 0")
    a("v_mul_f32 v%d, v%d, v%d" % (vH, vH, vT + 4))
    st(9)
    a("L_bp:")
    a("global_load_dwordx4 v[%d:%d], v%d, %s sc1" % (vB, vB + 3, vT + 2, WS))
    a("s_sub_u32 %s, %s, 1" % (sRY, sRY))
    a("s_cbranch_scc1 L_bok")
    a("s_waitcnt vmcnt(%d)" % (NP - 1))
    a("v_max3_u32 v%d, v%d, v%d, v%d" % (vT + 4, vB, vB + 1, vB + 2))
    a("v_max_u32 v%d, v%d, v%d" % (vT + 4, vT + 4, vB + 3))
    a("v_cmp_eq_u32 vcc, -1, v%d" % (vT + 4))
    if masked:
        a("s_and_b64 exec, exec, vcc")
        a("s_cbranch_scc1 L_bp")
        a("L_bok:")
        a("s_mov_b64 exec, -1")
    else:
        a("s_cbranch_vccnz L_bp")
        a("L_bok:")
    st(10)
    for r in (0, 2, 1, 3):
        a("v_mul_f32 v%d, v%d, v%d" % (vA + r, vH, vB + r))
    a("s_cmp_lg_u32 %s, 0" % sCL)
    a("v_permlane32_swap_b32 v%d, v%d" % (vA, vA + 2))
    a("v_permlane32_swap_b32 v%d, v%d" % (vA + 1, vA + 3))
    a("v_add_f32 v%d, v%d, v%d" % (vA, vA, vA + 2))
    a("v_add_f32 v%d, v%d, v%d" % (vA + 1, vA + 1, vA + 3))
    a("s_nop 1")
    a("v_permlane16_swap_b32 v%d, v%d" % (vA, vA + 1))
    a("v_add_f32 v%d, v%d, v%d" % (vA, vA, vA + 1))
    a("s_nop 1")
    a("v_add_f32_dpp v%d, v%d, v%d row_ror:8 %s" % (vA, vA, vA, full))
    a("s_nop 1")
    a("v_add_f32_dpp v%d, v%d, v%d row_ror:4 %s" % (vA, vA, vA, full))
    a("v_cvt_pk_bf16_f32 v%d, v%d, v%d" % (vA, vA, vA))
    st(11)
    a("global_store_short v%d, v%d, %s %s" % (vT + 3, vA, OUT, outpol))
    a("s_cbranch_scc1 L_more")
    a("L_end:")
    if ST: a("s_branch L_diag")
    a("L_exit:")
    a("s_endpgm")
    a("L_more:")
    a("s_max_i32 %s, %s, 64" % (sRY, sRY))
    a("s_ff1_i32_b32 %s, %s" % (sSP, sCL))
    a("s_bitset0_b32 %s, %s" % (sCL, sSP))
    a("s_lshr_b32 %s, %s, 3" % (sT0, sSP))
    a("s_lshl_b32 %s, %s, 3" % (sT0, sT0))
    a("v_add_u32 v%d, %s, v%d" % (vT + 1, sT0, vHa))
    a("global_load_dwordx2 v[%d:%d], v%d, %s sc1" % (vH, vH + 1, vT + 1, WS))
    a("s_waitcnt vmcnt(0)")
    a("s_branch L_col")
    a("L_hr:")
    a("s_sub_u32 %s, %s, 1" % (sRY, sRY))
    a("s_cbranch_scc1 L_hto")
    a("s_cmp_eq_u32 %s, -1" % sDN)
    a("s_cbranch_scc1 L_hl")
    a("s_lshl_b32 %s, %s, 4" % (sT0, sH))
    a("v_mov_b32 v%d, %s" % (vT + 4, sT0))
    a("global_load_dword v%d, v%d, %s offset:4 sc1" % (vT + 4, vT + 4, DBG))
    a("s_waitcnt vmcnt(0)")
    a("v_readfirstlane_b32 %s, v%d" % (sT0, vT + 4))
    a("s_nop 0")
    a("s_andn2_b32 %s, %s, %s" % (sT0, sT0, sDN))
    a("s_cbranch_scc0 L_hl")
    a("s_ff1_i32_b32 %s, %s" % (sT0, sT0))
    a("s_bitset1_b32 %s, %s" % (sDN, sT0))
    a("s_bitset1_b32 %s, %s" % (sCL, sT0))
    a("s_add_u32 %s, %s, %s" % (sT0, sT0, sCH))
    a("s_lshl_b32 %s, %s, 10" % (sT1, sT0))
    a("v_add_u32 v%d, %s, v%d" % (vT + 4, sT1, vLin))
    a("s_lshl_b32 %s, %s, 4" % (sT1, sT0))
    a("s_add_u32 %s, %s, 0x%x" % (sT1, sT1, HDR))
    a("v_mov_b32 v%d, %s" % (vT + 5, sT1))
    a("v_add_u32 v%d, 0x%x, v%d" % (vT + 6, SLOW, vT + 4))
    a("v_add_u32 v%d, 0x%x, v%d" % (vT + 7, SLOW, vT + 5))
    a("global_load_dwordx4 v[%d:%d], v%d, %s sc1" % (vB + 4, vB + 7, vT + 6, WS))
    a("global_load_dwordx4 v[%d:%d], v%d, %s sc1" % (vB + 8, vB + 11, vT + 7, WS))
    a("s_waitcnt vmcnt(0)")
    a("global_store_dwordx4 v%d, v[%d:%d], %s" % (vT + 4, vB + 4, vB + 7, WS))
    a("s_waitcnt vmcnt(0)")
    a("global_store_dwordx4 v%d, v[%d:%d], %s" % (vT + 5, vB + 8, vB + 11, WS))
    a("L_hl:")
    a("global_load_dwordx2 v[%d:%d], v%d, %s sc1" % (vH, vH + 1, vT + 1, WS))
    a("s_waitcnt vmcnt(0)")
    a("s_branch L_hc")
    a("L_hto:")
    a("s_mov_b32 %s, 64" % sRY)
    a("s_branch L_hok")

    a("L_fin:")
    if fprio: a("s_setprio %d" % fprio)
    a("s_waitcnt lgkmcnt(0)")
    a("v_readfirstlane_b32 %s, v%d" % (sFL, t0))
    a("s_barrier")
    st(12)
    F.done = 15
    for i in range(32 - late, 32): F.issue(i)
    a("ds_read_b128 v[%d:%d], v%d offset:%d" % (vA, vA + 3, vLin, 7 * 1024))
    a("s_cmp_eq_u32 %s, 0" % sFL)
    a("s_waitcnt lgkmcnt(0)")
    k = 0
    while k < G - late:
        F.wait(G + k); pv(k, False); k += 1
    def add2(d, x, y):
        if pk: a("v_pk_add_f32 v[%d:%d], v[%d:%d], v[%d:%d]" % (d, d + 1, x, x + 1, y, y + 1))
        else:
            a("v_add_f32 v%d, v%d, v%d" % (d, x, y)); a("v_add_f32 v%d, v%d, v%d" % (d + 1, x + 1, y + 1))
    if two:
        q = lambda w: vX + 4 * w
        def padd(d, x, y): add2(d, x, y); add2(d + 2, x + 2, y + 2)
        a("s_barrier")
        for w in range(4):
            a("ds_read_b128 v[%d:%d], v%d offset:%d" % (q(w), q(w) + 3, vLin, w * 1024))
        a("s_waitcnt lgkmcnt(2)"); padd(q(0), q(0), q(1))
        a("s_waitcnt lgkmcnt(0)"); padd(q(2), q(2), q(3))
        padd(q(0), q(0), q(2))
        for _ in range(na):
            F.wait(G + k); pv(k, False); k += 1
        a("s_barrier")
        st(6)
        for w in range(4, 7):
            a("ds_read_b128 v[%d:%d], v%d offset:%d" % (q(w), q(w) + 3, vLin, w * 1024))
        for _ in range(nb):
            if k < G: F.wait(G + k); pv(k, False); k += 1
        a("s_waitcnt lgkmcnt(0)")
        todo = [(q(0), q(0), q(4)), (q(0) + 2, q(0) + 2, q(4) + 2), (q(5), q(5), q(6)), (q(5) + 2, q(5) + 2, q(6) + 2),
                (q(0), q(0), q(5)), (q(0) + 2, q(0) + 2, q(5) + 2)]
        while k < G:
            n = -(-len(todo) // (G - k))
            for _ in range(max(n, min(2, len(todo)))): add2(*todo.pop(0))
            F.wait(G + k); pv(k, False); k += 1
        for x in todo: add2(*x)
        st(5)
        a("s_nop 7")
        add2(vA, vA, q(0)); add2(vA + 2, vA + 2, q(0) + 2)
        a("s_cbranch_scc1 L_bs")
        a("global_store_dwordx4 v%d, v[%d:%d], %s" % (vSt, vA, vA + 3, WS))
    else:
        a("s_barrier")
        st(6)
        for w in range(7):
            a("ds_read_b128 v[%d:%d], v%d offset:%d" % (vX + 4 * w, vX + 4 * w + 3, vLin, w * 1024))
        for _ in range(npre):
            F.wait(G + k); pv(k, False); k += 1
        def padd(d, x, y):
            a("v_pk_add_f32 v[%d:%d], v[%d:%d], v[%d:%d]" % (d, d + 1, x, x + 1, y, y + 1))
            a("v_pk_add_f32 v[%d:%d], v[%d:%d], v[%d:%d]" % (d + 2, d + 3, x + 2, x + 3, y + 2, y + 3))
        q = lambda w: vX + 4 * w
        a("s_waitcnt lgkmcnt(5)"); padd(q(0), q(0), q(1))
        a("s_waitcnt lgkmcnt(3)"); padd(q(2), q(2), q(3))
        a("s_waitcnt lgkmcnt(1)"); padd(q(4), q(4), q(5))
        padd(q(0), q(0), q(2))
        a("s_waitcnt lgkmcnt(0)"); padd(q(4), q(4), q(6))
        padd(q(0), q(0), q(4))
        padd(vA, vA, q(0))
        a("s_nop 0")
        while k < G:
            F.wait(G + k); pv(k, False); k += 1
        st(5)
        a("s_cbranch_scc1 L_bs")
        a("s_nop 6")
        a("global_store_dwordx4 v%d, v[%d:%d], %s" % (vSt, vA, vA + 3, WS))
    st(7)
    if ST: a("s_branch L_diag")
    a("s_endpgm")
    a("L_bs:")
    a("v_add_u32 v%d, 0x%x, v%d" % (vSt, SLOW, vSt))
    a("s_lshl_b32 %s, 1, %s" % (sT0, sSP))
    a("s_lshl_b32 %s, %s, 4" % (sT1, sH))
    a("v_mov_b32 v2, %s" % sT0)
    a("v_mov_b32 v3, %s" % sT1)
    a("s_nop 2")
    a("global_store_dwordx4 v%d, v[%d:%d], %s sc1" % (vSt, vA, vA + 3, WS))
    a("s_waitcnt vmcnt(0)")
    a("s_mov_b64 exec, 1")
    a("global_atomic_or v3, v2, %s offset:4 sc1" % DBG)
    a("s_branch L_end")

    a("L_helper:")
    if hprio: a("s_setprio %d" % hprio)
    a("s_load_dwordx8 s[12:19], s[0:1], 32")
    a("s_load_dwordx2 s[20:21], s[0:1], 64")
    a("v_and_b32 v1, 63, v0")
    a("s_lshr_b32 %s, %s, 4" % (sH, sCH))
    a("s_and_b32 %s, %s, 15" % (sSP, sCH))
    a("v_lshlrev_b32 v4, 4, v1")
    a("v_lshrrev_b32 v10, 5, v1")
    a("s_getreg_b32 %s, hwreg(HW_REG_XCC_ID, 0, 4)" % sIN)
    a("s_add_u32 %s, %s, 1" % (sIN, sIN))
    a("s_lshl_b32 %s, %s, 4" % (sT0, sH))
    a("v_mov_b32 v18, %s" % sT0)
    for i in range(4): a("v_mov_b32 v%d, -1" % (44 + i))
    for i in range(4): a("v_mov_b32 v%d, 0" % (24 + i))
    a("v_mov_b32 v20, 0xff7fffff")
    a("v_mov_b32 v19, %s" % sIN)
    a("s_lshl_b32 %s, %s, 8" % (sT1, sH))
    a("s_cmp_lg_u32 %s, 0" % sSP)
    a("s_waitcnt lgkmcnt(0)")
    st(1)
    if vt & 1:
        a("s_mov_b64 exec, 1")
        a("global_load_dword v53, v3, %s nt" % VS)
        a("s_mov_b64 exec, -1")
    if wt:
        a("s_mov_b64 exec, 1")
        if wt & 1: a("v_mov_b32 v54, 0x100000"); a("global_load_dword v53, v54, %s" % WS)
        if wt & 2: a("v_mov_b32 v54, 0"); a("global_load_dword v53, v54, %s" % OUT)
        a("s_mov_b64 exec, -1")
    a("s_cbranch_scc1 L_np")
    a("s_add_u32 %s, %s, 0x%x" % (sT0, sT1, HDR))
    a("v_lshl_add_u32 v11, v1, 2, %s" % sT0)
    a("global_store_dword v11, v44, %s" % WS)
    a("s_waitcnt vmcnt(0)")
    a("s_mov_b64 exec, 1")
    a("global_store_dword v18, v19, %s sc1" % DBG)
    a("s_mov_b64 exec, -1")
    a("global_load_dword v52, v11, %s sc1" % WS)
    a("L_np:")
    st(2)
    a("s_cmp_lg_u32 %s, %d" % (sSP, treesp))
    a("s_cbranch_scc1 L_nt")
    a("s_load_dword %s, %s, 0" % (sMK, MK))
    a("v_or_b32 v11, %s, v5" % sT1)
    a("global_load_dwordx4 v[36:39], v11, %s" % KT)
    a("v_bfe_u32 v12, v1, 3, 1")
    a("v_lshl_add_u32 v11, v12, 8, v11")
    a("v_add_u32 v11, %s, v11" % sT1)
    a("global_load_dwordx4 v[40:43], v11, %s" % QS)
    a("v_and_b32 v11, 15, v1")
    a("v_bfe_u32 v12, v1, 4, 1")
    a("v_lshl_add_u32 v11, v11, 1, v12")
    a("v_lshl_add_u32 v11, v11, 3, %s" % sT1)
    a("global_load_dwordx2 v[28:29], v11, %s" % VT)
    a("s_mov_b32 %s, 0x%08x" % (sC, f2u(C_QK)))
    a("s_waitcnt vmcnt(0) lgkmcnt(0)")
    a("v_mfma_f32_16x16x32_bf16 v[32:35], v[36:39], v[40:43], 0")
    a("s_lshl_b32 %s, %s, 16" % (sMK, sMK))
    a("v_sub_f32 v11, 1.0, %s" % sMK)
    a("v_mul_f32 v11, 0x%08x, v11" % f2u(C_MASK))
    a("v_lshlrev_b32 v24, 16, v28")
    a("v_and_b32 v25, 0xffff0000, v28")
    a("v_lshlrev_b32 v26, 16, v29")
    a("v_and_b32 v27, 0xffff0000, v29")
    a("v_cmp_gt_u32 vcc, 32, v1")
    a("v_add_f32_dpp v33, v32, v33 %s" % dpp(0))
    a("v_add_f32_dpp v35, v34, v35 %s" % dpp(2))
    a("s_nop 0")
    a("v_add_f32_dpp v32, v33, v35 %s" % dpp(1))
    a("v_fma_f32 v32, v32, %s, v11" % sC)
    a("s_nop 1")
    a("v_mov_b32_dpp v33, v32 row_newbcast:3 %s" % full)
    a("v_mov_b32_dpp v34, v32 row_newbcast:11 %s" % full)
    a("v_cndmask_b32 v20, v34, v33, vcc")
    a("L_nt:")
    a("v_lshlrev_b32 v6, 6, v10")
    a("ds_write_b32 v6, v20 offset:%d" % (LM + 32))
    a("v_and_b32 v7, 7, v1")
    a("v_lshl_add_u32 v7, v7, 2, v6")
    a("s_mov_b32 %s, %d" % (sT1, tries - 1))
    a("s_waitcnt vmcnt(0) lgkmcnt(0)")
    a("s_barrier")
    a("global_load_dword v19, v18, %s sc1" % DBG)
    if touch:
        a("s_lshl_b32 %s, %s, 5" % (sT0, sCH))
        a("v_mov_b32 v11, %s" % sT0)
        a("global_load_dword v52, v11, %s" % OUT)
    a("s_barrier")
    a("ds_read_b32 v14, v7 offset:%d" % LM)
    a("L_fl:")
    a("s_waitcnt vmcnt(0)")
    a("v_readfirstlane_b32 %s, v19" % sT0)
    a("s_nop 0")
    a("s_cmp_lg_u32 %s, 0" % sT0)
    a("s_cbranch_scc1 L_fl2")
    a("s_sub_u32 %s, %s, 1" % (sT1, sT1))
    a("s_cbranch_scc1 L_fl2")
    a("global_load_dword v19, v18, %s sc1" % DBG)
    a("s_branch L_fl")
    a("L_fl2:")
    a("s_cmp_eq_u32 %s, %s" % (sT0, sIN))
    a("s_cselect_b32 %s, %d, 0" % (sFL, 1 if fast else 0))
    if slowsel is not None:
        a("s_lshr_b32 %s, 0x%x, %s" % (sT0, slowsel, sSP))
        a("s_andn2_b32 %s, %s, %s" % (sFL, sFL, sT0))
    a("s_cmp_eq_u32 %s, 0" % sSP)
    a("s_cselect_b32 %s, 1, %s" % (sFL, sFL))
    st(3)
    a("v_mov_b32 v12, %s" % sFL)
    a("v_mov_b32 v13, 0")
    a("ds_write_b32 v13, v12 offset:%d" % LROLE)
    a("s_lshl_b32 %s, %s, 10" % (sT0, sCH))
    a("v_add_u32 v11, %s, v4" % sT0)
    a("s_cmp_eq_u32 %s, 0" % sFL)
    a("s_cbranch_scc1 L_nomk")
    a("global_store_dwordx4 v11, v[44:47], %s" % WS)
    a("global_load_dwordx4 v[48:51], v11, %s sc1" % WS)
    a("L_nomk:")
    def rowred(op, dst, src, steps):
        cur = src
        for s in steps:
            a("s_nop 1")
            a("%s_dpp v%d, v%d, v%d row_ror:%d %s" % (op, dst, cur, cur, s, full))
            cur = dst
    a("s_waitcnt lgkmcnt(0)")
    a("v_max_f32 v14, v14, v20")
    rowred("v_max_f32", 16, 14, (1, 2, 4))
    a("v_sub_f32 v20, v20, v16")
    a("v_exp_f32 v20, v20")
    a("s_lshl_b32 %s, %s, 4" % (sT0, sCH))
    a("s_add_u32 %s, %s, 0x%x" % (sT0, sT0, HDR))
    for i in range(4): a("v_mul_f32 v%d, v20, v%d" % (24 + i, 24 + i))
    a("ds_write_b128 v4, v[24:27] offset:%d" % (7 * 1024))
    a("v_lshl_add_u32 v13, v10, 3, %s" % sT0)
    a("s_waitcnt lgkmcnt(0)")
    st(4)
    a("s_barrier")
    a("ds_read_b32 v15, v7 offset:%d" % LL)
    a("s_cmp_eq_u32 %s, 0" % sFL)
    a("s_waitcnt lgkmcnt(0)")
    rowred("v_add_f32", 17, 15, (1, 2, 4))
    a("v_add_f32 v17, v17, v20")
    a("s_waitcnt vmcnt(0)")
    a("s_cbranch_scc1 L_hs")
    a("global_store_dwordx2 v13, v[16:17], %s" % WS)
    st(5)
    a("s_branch L_he")
    a("L_hs:")
    a("v_add_u32 v13, 0x%x, v13" % SLOW)
    a("global_store_dwordx2 v13, v[16:17], %s sc1" % WS)
    a("s_waitcnt vmcnt(0)")
    a("L_he:")
    if hbar and not ST: a("s_barrier")
    if ST:
        a("s_barrier"); a("s_barrier")
        if two: a("s_barrier")
        a("L_diag:")
        a("s_mov_b64 exec, -1")
        if ST == "st": st0.dump(sW, NW + 1, WS)
        else: st0.encode(int(ST), k=enc_k)
    a("s_endpgm")
    return wrap(a.text(), NWG, (NW + 1) * 64, LDS, nv, nsgpr=96)

if __name__ == "__main__":
    kw = {}
    for x in sys.argv[1:]:
        k, v = x.split("=")
        try: v = eval(v)
        except: pass
        kw[k] = v
    if "ST" in kw and kw["ST"] != "st": kw["ST"] = str(kw["ST"])
    sys.stdout.write(gen(**kw))
```

```python
import sys
from common import *

REF = ((594,4372,5505,4501),(1054,2510,6667,840),(1168,5720),(195,4685,8079,2261,1793),(251,4422))
def gen(ST=False, pol="nt", D=7, DV=None, B0=27, fast=1, outpol="", stamps=None, enc_k=10, tries=4, slowsel=None,
        wb=(3, 2), cg=(1, 2, 16, 32, 64), NP=4, npre=4, treesp=1, RY=0x400000, sm=(15, 16, 17, 18), hm=(19, 20, 21, 22), masked=0, cm=1, fill=1, fpos=64, hmask=None, noA0=0, arate=4, wprio=0, qpos=None, dg=0, fstr=4, hprio=0, flpol='sc1', pat=REF, DR=8, DE=7, NE=4, rate=16, preA=1,
        order="hpf"):
    NW, G, NWG = 4, 32, 256
    FIN = NW - 1
    DV = DV or [D] * 48 + [min(DR, D + 1 + k) for k in range(16 - NE)] + [DE] * NE
    a = Asm()
    st0 = Stamps(a, ST, base=64)
    def st(i):
        if stamps is None or i in stamps: st0(i)
    QS, KS, VS, KT = "s[4:5]", "s[6:7]", "s[8:9]", "s[10:11]"
    VT, MK, OUT, DBG, WS = "s[12:13]", "s[14:15]", "s[16:17]", "s[18:19]", "s[20:21]"
    sW, sH, sSP, sC, sIN, sFL, sT0, sT1, sCH = "s28", "s29", "s30", "s31", "s32", "s33", "s34", "s35", "s36"
    sDN, sRY, sCL, sCO = "s38", "s39", "s40", "s41"
    vKo, vVo = 2, 3
    vLin, vSt, vMw, vMr = 4, 5, 6, 7
    vA = 8
    vHa, vBa, vOa, vRo = 12, 13, 14, 15
    vH = 16
    vM = 20
    vT = 24
    vP = 32
    vR = 48
    vQ0, vQ1 = 104, 108
    NT = 8
    vD = 112
    nv = 240
    vX = vP
    dpp = lambda p: "quad_perm:[%d,%d,%d,%d] row_mask:0xf bank_mask:0xf" % (p, p, p, p)
    full = "row_mask:0xf bank_mask:0xf"
    LM = 4096
    LL = LM + 64
    LROLE = LL + 64
    LDS = LROLE + 16
    HDR = 1024
    SLOW = 2048
    assert min(sm + hm) >= 12
    def runs(m):
        out = []; i = 0
        while i < 4:
            j = i
            while j + 1 < 4 and m[j + 1] == m[j] + 1: j += 1
            out.append((i, j - i + 1, m[i])); i = j + 1
        return out
    def sscat(dst, src, m, base=None):
        first = True
        for (o, n, p) in runs(m):
            t = dst if first else "s42"
            if n == 4: a("s_lshl_b32 %s, %s, %d" % (t, src, p))
            else:
                a("s_bfe_u32 %s, %s, 0x%x" % (t, src, (n << 16) | o)); a("s_lshl_b32 %s, %s, %d" % (t, t, p))
            if not first: a("s_or_b32 %s, %s, s42" % (dst, dst))
            first = False
        if base: a("s_or_b32 %s, %s, %s" % (dst, dst, base))
    def hscat():
        if hmask is None: return sscat(sCO, sH, hm)
        a("s_mov_b32 %s, 0" % sCO)
        for k, m in enumerate(hmask):
            a("s_bitcmp1_b32 %s, %d" % (sH, k)); a("s_cselect_b32 s42, 0x%x, 0" % m); a("s_xor_b32 %s, %s, s42" % (sCO, sCO))
    def vscat(dst, src, m, base, tmp):
        cur = base
        for (o, n, p) in runs(m):
            if n == 4: a("v_lshl_or_b32 v%d, v%d, %d, %s" % (dst, src, p, cur))
            else:
                a("v_bfe_u32 v%d, v%d, %d, %d" % (tmp, src, o, n)); a("v_lshl_or_b32 v%d, v%d, %d, %s" % (dst, tmp, p, cur))
            cur = "v%d" % dst

    a("s_load_dwordx8 s[4:11], s[0:1], 0")
    st0.init()
    a("s_cmp_ge_u32 s2, %d" % NWG)
    a("s_cbranch_scc1 L_exit")
    if pat is None:
        a("v_lshrrev_b32 v4, 6, v0")
        a("v_and_b32 v2, 3, v0")
        a("s_and_b32 %s, s2, 7" % sT0)
        a("v_readfirstlane_b32 %s, v4" % sW)
        a("s_lshr_b32 %s, s2, 3" % sT1)
        a("s_lshl_b32 %s, %s, 5" % (sT0, sT0))
        a("s_or_b32 %s, %s, %s" % (sCH, sT0, sT1))
        a("s_lshl_b32 %s, %s, 17" % (sT0, sCH))
        a("v_bfe_u32 v5, v0, 4, 2")
        a("v_lshlrev_b32 v2, 4, v2")
        a("v_lshl_or_b32 v5, v5, 6, v2")
        a("v_bfe_u32 v6, v0, 2, 2")
        if wb[1] == wb[0] + 1:
            a("v_lshl_or_b32 v3, v4, %d, %s" % (wb[0] + 10, sT0))
        else:
            a("v_bfe_u32 v7, v0, 6, 1"); a("v_lshl_or_b32 v3, v7, %d, %s" % (wb[0] + 10, sT0))
            a("v_bfe_u32 v7, v0, 7, 1"); a("v_lshl_or_b32 v3, v7, %d, v3" % (wb[1] + 10))
        a("v_lshl_or_b32 v2, v6, 8, v5")
        a("s_cmp_eq_u32 %s, %d" % (sW, NW))
        a("v_or_b32 v%d, v2, v3" % vKo)
        a("s_cbranch_scc1 L_helper")
        if wprio: a("s_setprio %d" % wprio)
        a("s_waitcnt lgkmcnt(0)")
        st(1)
        def gx(g):
            x = 0
            for k in range(5):
                if g >> k & 1: x ^= cg[k]
            return x << 10
        immmask = 0
        for b in (0, 1):
            if b not in wb: immmask |= 1024 << b
    else:
        rt = pat == "rt"
        if rt:
            a("s_load_dwordx16 s[44:59], s[0:1], 72")
            a("s_load_dwordx2 s[60:61], s[0:1], 136")
        a("v_lshrrev_b32 v4, 6, v0")
        a("v_and_b32 v2, 3, v0")
        a("v_bfe_u32 v5, v0, 4, 2")
        a("v_readfirstlane_b32 %s, v4" % sW)
        a("v_lshlrev_b32 v2, 4, v2")
        a("v_lshl_or_b32 v5, v5, 6, v2")
        a("v_bfe_i32 v6, v0, 2, 1")
        a("v_bfe_i32 v7, v0, 3, 1")
        if rt:
            a("s_waitcnt lgkmcnt(0)")
            a("s_add_u32 %s, s2, s59" % sT0); a("s_and_b32 %s, %s, 7" % (sT0, sT0))
        else:
            a("s_and_b32 %s, s2, 7" % sT0)
        a("s_lshr_b32 %s, s2, 3" % sT1)
        a("s_lshl_b32 %s, %s, 5" % (sT0, sT0))
        a("s_or_b32 %s, %s, %s" % (sCH, sT0, sT1))
        a("s_cmp_eq_u32 %s, %d" % (sW, NW))
        a("s_cbranch_scc1 L_helper")
        a("s_lshr_b32 %s, %s, 4" % (sH, sCH))
        if rt:
            a("s_lshr_b32 %s, s59, 8" % sT1); a("s_lshl_b32 s43, %s, %s" % (sH, sT1))
            J = ("s60", "s61"); col = lambda k: "s%d" % (44 + k)
        else:
            a("s_lshl_b32 s43, %s, 21" % sH)
            cols = [c << 8 for c in list(pat[0]) + list(pat[1]) + list(pat[2])]
            J = ("s60", "s61"); col = lambda k: "0x%x" % cols[k]
            a("s_mov_b32 s60, 0x%x" % (pat[4][0] << 8)); a("s_mov_b32 s61, 0x%x" % (pat[4][1] << 8))
            x = 0
            for k in range(5):
                x ^= pat[3][k]; a("s_mov_b32 s%d, 0x%x" % (54 + k, x << 8))
        a("v_and_b32 v6, %s, v6" % J[0]); a("v_and_b32 v7, %s, v7" % J[1])
        a("v_xor_b32 v2, v6, v7"); a("v_xor_b32 v2, v2, v5")
        for k in range(10):
            if not rt and cols[k] == 0: continue
            a("s_bitcmp1_b32 %s, %d" % ((sCH, k) if k < 8 else (sW, k - 8)))
            a("s_cselect_b32 %s, %s, 0" % (sT1, col(k)))
            a("s_xor_b32 s43, s43, %s" % sT1)
        a("v_xor_b32 v%d, s43, v2" % vKo)
        a("s_waitcnt lgkmcnt(0)")
        st(1)
    class Stream:
        def __init__(s): s.cur = {vKo: 0, vVo: 0}; s.ops = []; s.done = -1
        def copy(s):
            t = Stream(); t.cur = dict(s.cur); t.ops = list(s.ops); t.done = s.done; return t
        def issue(s, i, sep=False):
            g = i % G
            vo, base = (vKo, KS) if i < G else (vVo, VS)
            if pat is not None:
                if g: a("v_xor_b32 v%d, s%d, v%d" % (vo, 54 + (g & -g).bit_length() - 1, vo))
                a("global_load_dwordx4 v[%d:%d], v%d, %s %s" % (vD + 4 * g, vD + 4 * g + 3, vo, base, pol))
                s.ops.append(i)
                return
            x = gx(g); hi = x & ~immmask
            if hi != s.cur[vo]:
                a("v_xor_b32 v%d, 0x%x, v%d" % (vo, hi ^ s.cur[vo], vo)); s.cur[vo] = hi
            elif sep: a("s_nop 0")
            a("global_load_dwordx4 v[%d:%d], v%d, %s offset:%d %s" % (vD + 4 * g, vD + 4 * g + 3, vo, base, x & immmask, pol))
            s.ops.append(i)
        def wait(s, x):
            if x > s.done:
                a("s_waitcnt vmcnt(%d)" % (len(s.ops) - 1 - s.ops.index(x))); s.done = x
                return True
            return False
        def slot(s, i):
            w = i - DV[i] >= 0 and s.wait(i - DV[i])
            s.issue(i, sep=(not w and 0 < i < D))
    S = Stream()
    def qloads():
        a("s_load_dwordx8 s[12:19], s[0:1], 32")
        a("s_load_dwordx2 s[20:21], s[0:1], 64")
        a("s_lshr_b32 %s, %s, 4" % (sH, sCH))
        a("v_bfe_u32 v6, v0, 3, 1")
        a("v_lshl_or_b32 v7, v6, 8, v5")
        a("s_lshl_b32 %s, %s, 9" % (sT1, sH))
        a("v_or_b32 v7, %s, v7" % sT1)
        for i in range(4): a("v_mov_b64 v[%d:%d], 0" % (vQ0 + 2 * i, vQ0 + 2 * i + 1))
        a("s_mov_b32 exec_lo, 0x0f0f0f0f"); a("s_mov_b32 exec_hi, exec_lo")
        a("global_load_dwordx4 v[%d:%d], v7, %s" % (vQ0, vQ0 + 3, QS))
        a("s_not_b64 exec, exec")
        a("global_load_dwordx4 v[%d:%d], v7, %s" % (vQ1, vQ1 + 3, QS))
        a("s_mov_b64 exec, -1")
        S.ops.extend(["Q0", "Q1"])
    def consts():
        t = vT
        a("v_and_b32 v1, 63, v0")
        a("v_lshlrev_b32 v%d, 4, v1" % vLin)
        if pat is None:
            a("v_or_b32 v%d, v%d, v3" % (vVo, vLin))
        else:
            a("v_bfe_i32 v%d, v0, 4, 1" % t); a("v_bfe_i32 v%d, v0, 5, 1" % (t + 1))
            a("v_and_b32 v%d, s60, v%d" % (t, t)); a("v_and_b32 v%d, s61, v%d" % (t + 1, t + 1))
            a("v_and_b32 v%d, 0xf0, v%d" % (vVo, vLin)); a("v_xor_b32 v%d, v%d, v%d" % (t, t, t + 1))
            a("v_xor_b32 v%d, s43, v%d" % (vVo, vVo)); a("v_xor_b32 v%d, v%d, v%d" % (vVo, vVo, t))
        a("v_lshlrev_b32 v%d, 5, v6" % vMr)
        a("s_lshl_b32 %s, %s, 2" % (sT0, sW))
        a("v_add_u32 v%d, %s, v%d" % (vMw, sT0, vMr))
        a("s_and_b32 %s, %s, 15" % (sSP, sCH))
        a("v_lshlrev_b32 v%d, 4, v0" % (vH + 3))
        hscat()
        a("s_and_b32 %s, %s, 8" % (sT0, sSP))
        a("s_add_u32 %s, %s, %s" % (sT0, sT0, sCO))
        a("v_lshrrev_b32 v%d, 2, v1" % vBa)
        a("v_lshl_add_u32 v%d, v%d, 4, %s" % (vH + 2, vBa, sT0))
        a("s_mov_b32 %s, 0x%08x" % (sC, f2u(C_QK)))
        a("v_and_b32 v%d, 1, v1" % t)
        a("v_lshlrev_b32 v%d, 4, v%d" % (t, t))
        a("v_mov_b32 v%d, 0xffff" % (t + 1))
        a("v_lshlrev_b32 v%d, v%d, v%d" % (t, t, t + 1))
        a("s_mov_b32 vcc_lo, 0x03030303"); a("s_mov_b32 vcc_hi, vcc_lo")
        for i in range(4):
            a("v_cndmask_b32 v%d, 0, v%d, vcc" % (vM + i, t))
            if i < 3: a("s_lshl_b64 vcc, vcc, 2")
    tile = lambda p: vR + 4 * (p % NT)
    def qk(g):
        d = tile(g // 2)
        q = (vQ0, vQ1)[g & 1]
        a("v_mfma_f32_16x16x32_bf16 v[%d:%d], v[%d:%d], v[%d:%d], %s" % (d, d + 3, vD + 4 * g, vD + 4 * g + 3, q, q + 3,
            "0" if g % 2 == 0 else "v[%d:%d]" % (d, d + 3)))
    t0, t1, t2 = vT, vT + 1, vT + 2
    def red2(p):
        for x in (p, p + 1):
            b = tile(x)
            a("v_add_f32_dpp v%d, v%d, v%d %s" % (b + 1, b, b + 1, dpp(0)))
            a("v_add_f32_dpp v%d, v%d, v%d %s" % (b + 3, b + 2, b + 3, dpp(2)))
        for x in (p, p + 1):
            b = tile(x)
            a("v_add_f32_dpp v%d, v%d, v%d %s" % (vP + x, b + 1, b + 3, dpp(1)))
        if p == 0: a("v_max_f32 v%d, v%d, v%d" % (t0, vP, vP + 1))
        else: a("v_max3_f32 v%d, v%d, v%d, v%d" % (t0, t0, vP + p, vP + p + 1))
    P = G // 2
    def soft1():
        a("v_mov_b32 v%d, v%d" % (t1, t0))
        a("s_nop 1")
        a("v_permlane32_swap_b32 v%d, v%d" % (t0, t1))
        a("v_max_f32 v%d, v%d, v%d" % (t0, t0, t1))
        a("v_mov_b32 v%d, v%d" % (t1, t0))
        a("s_nop 1")
        a("v_permlane16_swap_b32 v%d, v%d" % (t0, t1))
        a("v_max_f32 v%d, v%d, v%d" % (t0, t0, t1))
        a("s_nop 1")
        a("v_mov_b32_dpp v%d, v%d %s" % (t1, t0, dpp(3)))
        a("s_nop 1")
        a("v_max_f32_dpp v%d, v%d, v%d row_half_mirror %s" % (t0, t1, t1, full))
        a("v_mul_f32 v%d, %s, v%d" % (t0, sC, t0))
        a("ds_write_b32 v%d, v%d offset:%d" % (vMw, t0, LM))
    def soft2():
        L = []
        e = L.append
        e("s_waitcnt lgkmcnt(0)")
        e("v_max3_f32 v%d, v%d, v%d, v%d" % (t0, vT + 4, vT + 5, vT + 6))
        e("v_max3_f32 v%d, v%d, v%d, v%d" % (t0, t0, vT + 7, vT + 3))
        for p in range(P): e("v_fma_f32 v%d, v%d, %s, -v%d" % (vP + p, vP + p, sC, t0))
        for p in range(P): e("v_exp_f32_dpp v%d, v%d %s" % (vP + p, vP + p, dpp(3)))
        e("v_add_f32 v%d, v%d, v%d" % (t1, vP, vP + 1))
        for p in range(2, P): e("v_add_f32 v%d, v%d, v%d" % (t1, t1, vP + p))
        cv = lambda p: e("v_cvt_pk_bf16_f32 v%d, v%d, v%d" % (vP + p, vP + p, vP + p))
        e("v_mov_b32 v%d, v%d" % (t2, t1))
        cv(0); cv(1)
        e("v_permlane32_swap_b32 v%d, v%d" % (t1, t2))
        e("v_add_f32 v%d, v%d, v%d" % (t1, t1, t2))
        e("v_mov_b32 v%d, v%d" % (t2, t1))
        cv(2); cv(3)
        e("v_permlane16_swap_b32 v%d, v%d" % (t1, t2))
        e("v_add_f32 v%d, v%d, v%d" % (t2, t1, t2))
        cv(4); cv(5)
        e("v_add_f32_dpp v%d, v%d, v%d row_half_mirror %s" % (t1, t2, t2, full))
        e("ds_write_b32 v%d, v%d offset:%d" % (vMw, t1, LL))
        for p in range(6, P): cv(p)
        return L
    def ands(g):
        src = vP + g // 2
        dst = vR + 4 * (g % 16)
        for i in range(4):
            if (i >> 1) == (g & 1): a("v_and_b32 v%d, v%d, v%d" % (dst + i, src, vM + i))
            else: a("v_and_b32_dpp v%d, v%d, v%d row_half_mirror %s" % (dst + i, src, vM + i, full))
    def pv(g, zero=False):
        s = vR + 4 * (g % 16)
        a("v_mfma_f32_16x16x32_bf16 v[%d:%d], v[%d:%d], v[%d:%d], %s" % (vA, vA + 3, s, s + 3, vD + 4 * g, vD + 4 * g + 3,
            "0" if zero else "v[%d:%d]" % (vA, vA + 3)))

    nqk = 0; nred = 0; ripe = [0, 0, 0]
    i = 0
    while nqk < G:
        if i == (qpos or D):
            qloads(); consts(); st(2)
        if i >= G: assert nqk > i - G
        S.slot(i)
        if ripe[0] >= 2 * nred + 4:
            red2(nred); nred += 2
        qdone = "Q1" in S.ops and S.done >= 0 and S.ops.index(S.done) > S.ops.index("Q1")
        k = 0
        while qdone and nqk <= min(S.done, G - 1) and k < 2 and nqk // 2 < nred + NT:
            qk(nqk); nqk += 1; k += 1
        ripe = ripe[1:] + [nqk]
        if i == B0 and not noA0: a("s_barrier")
        i += 1
    st(3)
    while nred < P - 2:
        a("s_nop 7"); red2(nred); nred += 2
    a("s_nop 7")
    red2(nred)
    soft1()
    for _ in range(preA):
        S.slot(i); i += 1
    a("s_waitcnt lgkmcnt(0)")
    a("s_barrier")
    a("ds_read_b128 v[%d:%d], v%d offset:%d" % (vT + 4, vT + 7, vMr, LM))
    a("ds_read_b32 v%d, v%d offset:%d" % (vT + 3, vMr, LM + 16))
    L = soft2()
    while L:
        for x in L[:rate]: a(x)
        L = L[rate:]
        S.slot(i); i += 1
    a("s_waitcnt lgkmcnt(0)")
    st(4)
    a("s_barrier")
    a("v_mov_b32 v%d, 0" % vRo)
    a("ds_read_b32 v%d, v%d offset:%d" % (vRo, vRo, LROLE))
    a("s_cmp_eq_u32 %s, %d" % (sW, FIN))
    nand = 0; npv = 0; F = None
    assert i <= 48
    while True:
        k = 0
        while npv < min(nand, 16) and npv + G <= S.done and k < 4:
            pv(npv, npv == 0); npv += 1; k += 1
        k = 0
        while nand < min(G, npv + 16) and k < arate:
            ands(nand); nand += 1; k += 1
        if nand == G: break
        if i == 48:
            F = S.copy()
            a("s_cbranch_scc0 L_v48")
            a("s_waitcnt vmcnt(0)")
            a("L_v48:")
        if i >= 48: a("s_cbranch_scc1 L_sk%d" % i)
        S.slot(i)
        if i >= 48: a("L_sk%d:" % i)
        i += 1
    assert F is not None and npv == 16
    a("s_cbranch_scc1 L_fin")
    def cfill():
        assert cm
        sscat(sT0, sSP, sm, sCO)
        a("v_lshl_add_u32 v%d, v1, 4, %s" % (vT + 4, sT0))
        a("s_cmp_lg_u32 %s, 1" % sW)
        a("s_cbranch_scc1 L_nf")
        a("global_load_dword v%d, v%d, %s sc1" % (vT + 4, vT + 4, WS))
        a("L_nf:")
    while i < 64:
        S.slot(i); i += 1
        if fill & 2 and i == fpos: cfill()
        while npv + G <= S.done:
            pv(npv); npv += 1
    a("s_cmp_lg_u32 %s, 0" % sW)
    a("s_cbranch_scc1 L_nh")
    a("global_load_dwordx2 v[%d:%d], v%d, %s offset:%d sc1" % (vH, vH + 1, vH + 2, WS, HDR))
    a("L_nh:")
    a("s_barrier")
    st(12)
    while npv < G:
        S.wait(npv + G)
        pv(npv); npv += 1
    st(5)
    a("s_waitcnt lgkmcnt(0)")
    a("v_readfirstlane_b32 %s, v%d" % (sFL, vRo))
    a("s_nop 5")
    a("ds_write_b128 v%d, v[%d:%d]" % (vH + 3, vA, vA + 3))
    a("s_cselect_b32 %s, 0, %s" % (sFL, sFL))
    a("s_cmp_lg_u32 %s, 0" % sFL)
    a("s_waitcnt lgkmcnt(0)")
    a("s_barrier")
    a("s_cbranch_scc1 L_poll")
    a("L_end:")
    if ST: a("s_branch L_diag")
    a("L_exit:")
    a("s_endpgm")

    def poller():
        vB = vR
        t = vT
        a("L_poll:")
        a("v_and_b32 v%d, 3, v1" % (t + 3))
        vscat(vHa, vBa, sm, sCO, t)
        a("v_lshl_add_u32 v%d, v%d, 4, v%d" % (vBa, t + 3, vHa))
        a("v_lshrrev_b32 v%d, 4, v1" % t)
        a("v_lshl_add_u32 v%d, v%d, 3, v%d" % (t, t + 3, t))
        a("s_lshl_b32 %s, %s, 9" % (sT1, sH))
        a("v_lshl_add_u32 v%d, v%d, 1, %s" % (vOa, t, sT1))
        a("s_mov_b32 %s, 0" % sCL)
        a("s_cmp_eq_u32 %s, 0" % sSP)
        a("s_cselect_b32 %s, 0, -1" % sDN)
        a("s_mov_b32 %s, 0x%x" % (sRY, RY))
        a("L_col:")
        if cm:
            sscat(sT0, sSP, sm, sCO)
            a("v_add_u32 v%d, %s, v%d" % (vT + 2, sT0, vLin))
            a("s_lshl_b32 %s, %s, 6" % (sT0, sSP))
        else:
            a("s_lshl_b32 %s, %s, 6" % (sT0, sSP))
            a("v_add_u32 v%d, %s, v%d" % (vT + 2, sT0, vBa))
        a("s_and_b32 %s, %s, 0xc0" % (sT0, sT0))
        a("s_mul_i32 %s, %s, 34" % (sT1, sSP))
        a("s_and_b32 %s, %s, 0x108" % (sT1, sT1))
        a("s_or_b32 %s, %s, %s" % (sT0, sT0, sT1))
        a("v_add_u32 v%d, %s, v%d" % (vT + 3, sT0, vOa))
        a("v_mov_b32 v%d, -1" % vB)
        a("L_hc:")
        a("v_max_u32 v%d, v%d, v%d" % (vT + 4, vH, vH + 1))
        a("v_cmp_eq_u32 vcc, -1, v%d" % (vT + 4))
        a("s_cbranch_vccnz L_hr")
        a("L_hok:")
        st(8)
        for r in range(1, 4): a("v_mov_b32 v%d, -1" % (vB + r))
        def allred(op, x, src):
            y = x + 1
            a("%s_dpp v%d, v%d, v%d row_ror:8 %s" % (op, x, src, src, full))
            a("s_nop 1")
            a("%s_dpp v%d, v%d, v%d row_ror:4 %s" % (op, x, x, x, full))
            a("v_mov_b32 v%d, v%d" % (y, x))
            a("s_nop 1")
            a("v_permlane16_swap_b32 v%d, v%d" % (x, y))
            a("%s v%d, v%d, v%d" % (op, x, x, y))
            a("v_mov_b32 v%d, v%d" % (y, x))
            a("s_nop 1")
            a("v_permlane32_swap_b32 v%d, v%d" % (x, y))
            a("%s v%d, v%d, v%d" % (op, x, x, y))
        allred("v_max_f32", vT + 4, vH)
        a("v_sub_f32 v%d, v%d, v%d" % (vH, vH, vT + 4))
        a("v_exp_f32 v%d, v%d" % (vH, vH))
        a("s_nop 0")
        a("v_mul_f32 v%d, v%d, v%d" % (vH + 1, vH, vH + 1))
        a("s_nop 1")
        allred("v_add_f32", vT + 4, vH + 1)
        a("v_rcp_f32 v%d, v%d" % (vT + 4, vT + 4))
        a("s_nop 0")
        a("v_mul_f32 v%d, v%d, v%d" % (vH, vH, vT + 4))
        st(9)
        a("L_bp:")
        a("global_load_dwordx4 v[%d:%d], v%d, %s sc1" % (vB, vB + 3, vT + 2, WS))
        a("s_sub_u32 %s, %s, 1" % (sRY, sRY))
        a("s_cbranch_scc1 L_bok")
        a("s_waitcnt vmcnt(%d)" % (NP - 1))
        a("v_max3_u32 v%d, v%d, v%d, v%d" % (vT + 4, vB, vB + 1, vB + 2))
        a("v_max_u32 v%d, v%d, v%d" % (vT + 4, vT + 4, vB + 3))
        a("v_cmp_eq_u32 vcc, -1, v%d" % (vT + 4))
        if masked:
            a("s_and_b64 exec, exec, vcc")
            a("s_cbranch_scc1 L_bp")
            a("L_bok:")
            a("s_mov_b64 exec, -1")
        else:
            a("s_cbranch_vccnz L_bp")
            a("L_bok:")
        st(10)
        for r in (0, 2, 1, 3):
            a("v_mul_f32 v%d, v%d, v%d" % (vA + r, vH, vB + r))
        a("s_cmp_eq_u32 %s, 0" % sCL)
        a("v_permlane32_swap_b32 v%d, v%d" % (vA, vA + 2))
        a("v_permlane32_swap_b32 v%d, v%d" % (vA + 1, vA + 3))
        a("v_add_f32 v%d, v%d, v%d" % (vA, vA, vA + 2))
        a("v_add_f32 v%d, v%d, v%d" % (vA + 1, vA + 1, vA + 3))
        a("s_nop 1")
        a("v_permlane16_swap_b32 v%d, v%d" % (vA, vA + 1))
        a("v_add_f32 v%d, v%d, v%d" % (vA, vA, vA + 1))
        a("s_nop 1")
        a("v_add_f32_dpp v%d, v%d, v%d row_ror:8 %s" % (vA, vA, vA, full))
        a("s_nop 1")
        a("v_add_f32_dpp v%d, v%d, v%d row_ror:4 %s" % (vA, vA, vA, full))
        a("v_cvt_pk_bf16_f32 v%d, v%d, v%d" % (vA, vA, vA))
        st(11)
        a("global_store_short v%d, v%d, %s %s" % (vT + 3, vA, OUT, outpol))
        a("s_cbranch_scc0 L_more")
        if ST: a("s_branch L_diag")
        a("s_endpgm")
        a("L_more:")
        a("s_max_i32 %s, %s, 64" % (sRY, sRY))
        a("s_ff1_i32_b32 %s, %s" % (sSP, sCL))
        a("s_bitset0_b32 %s, %s" % (sCL, sSP))
        a("s_and_b32 %s, %s, 8" % (sT0, sSP))
        a("v_and_b32 v%d, -9, v%d" % (vH + 2, vH + 2))
        a("v_or_b32 v%d, %s, v%d" % (vH + 2, sT0, vH + 2))
        a("global_load_dwordx2 v[%d:%d], v%d, %s offset:%d sc1" % (vH, vH + 1, vH + 2, WS, HDR))
        a("s_waitcnt vmcnt(0)")
        a("s_branch L_col")
        a("L_hr:")
        a("s_sub_u32 %s, %s, 1" % (sRY, sRY))
        a("s_cbranch_scc1 L_hto")
        a("s_cmp_eq_u32 %s, -1" % sDN)
        a("s_cbranch_scc1 L_hl")
        a("s_lshl_b32 %s, %s, 4" % (sT0, sH))
        a("v_mov_b32 v%d, %s" % (vT + 4, sT0))
        a("global_load_dword v%d, v%d, %s offset:4 sc1" % (vT + 4, vT + 4, DBG))
        a("s_waitcnt vmcnt(0)")
        a("v_readfirstlane_b32 %s, v%d" % (sT0, vT + 4))
        a("s_nop 0")
        a("s_andn2_b32 %s, %s, %s" % (sT0, sT0, sDN))
        a("s_cbranch_scc0 L_hl")
        a("s_ff1_i32_b32 %s, %s" % (sT0, sT0))
        a("s_bitset1_b32 %s, %s" % (sDN, sT0))
        a("s_bitset1_b32 %s, %s" % (sCL, sT0))
        if cm:
            a("s_lshl_b32 %s, %s, 6" % (sT1, sT0))
            a("v_add_u32 v%d, %s, v%d" % (vT + 4, sT1, vBa))
        else:
            sscat(sT1, sT0, sm, sCO)
            a("v_add_u32 v%d, %s, v%d" % (vT + 4, sT1, vLin))
        a("s_lshl_b32 %s, %s, 4" % (sT0, sT0))
        a("s_add_u32 %s, %s, %s" % (sT0, sT0, sCO))
        a("v_mov_b32 v%d, %s" % (vT + 5, sT0))
        a("global_load_dwordx4 v[%d:%d], v%d, %s offset:%d sc1" % (vB + 4, vB + 7, vT + 4, WS, SLOW))
        a("global_load_dwordx4 v[%d:%d], v%d, %s offset:%d sc1" % (vB + 8, vB + 11, vT + 5, WS, SLOW + HDR))
        a("s_waitcnt vmcnt(0)")
        a("global_store_dwordx4 v%d, v[%d:%d], %s" % (vT + 4, vB + 4, vB + 7, WS))
        a("s_waitcnt vmcnt(0)")
        a("global_store_dwordx4 v%d, v[%d:%d], %s offset:%d" % (vT + 5, vB + 8, vB + 11, WS, HDR))
        a("L_hl:")
        a("global_load_dwordx2 v[%d:%d], v%d, %s offset:%d sc1" % (vH, vH + 1, vH + 2, WS, HDR))
        a("s_waitcnt vmcnt(0)")
        a("s_branch L_hc")
        a("L_hto:")
        a("s_mov_b32 %s, 64" % sRY)
        a("s_branch L_hok")

    def finisher():
        q = lambda w: vX + 4 * w
        def padd(d, x, y):
            a("v_pk_add_f32 v[%d:%d], v[%d:%d], v[%d:%d]" % (d, d + 1, x, x + 1, y, y + 1))
            a("v_pk_add_f32 v[%d:%d], v[%d:%d], v[%d:%d]" % (d + 2, d + 3, x + 2, x + 3, y + 2, y + 3))
        a("L_fin:")
        a("ds_read_b128 v[%d:%d], v%d" % (q(3), q(3) + 3, vH + 3))
        if cm:
            a("s_lshl_b32 %s, %s, 6" % (sT0, sSP)); a("s_or_b32 %s, %s, %s" % (sT0, sT0, sCO))
            vscat(vHa, vBa, sm, sT0, vT)
            a("v_and_b32 v%d, 48, v%d" % (vSt, vLin)); a("v_or_b32 v%d, v%d, v%d" % (vSt, vSt, vHa))
        else:
            sscat(sT0, sSP, sm, sCO)
            a("v_add_u32 v%d, %s, v%d" % (vSt, sT0, vLin))
        a("s_waitcnt lgkmcnt(0)")
        a("v_readfirstlane_b32 %s, v%d" % (sFL, vRo))
        a("s_barrier")
        st(12)
        F.done = 47
        for j in range(48, 64): F.issue(j)
        a("s_cmp_eq_u32 %s, 0" % sFL)
        a("s_barrier")
        st(6)
        for w in range(3):
            a("ds_read_b128 v[%d:%d], v%d offset:%d" % (q(w), q(w) + 3, vLin, w * 1024))
        k = 16
        for _ in range(npre):
            F.wait(G + k); pv(k); k += 1
        a("s_waitcnt lgkmcnt(1)"); padd(q(0), q(0), q(1))
        a("s_waitcnt lgkmcnt(0)"); padd(q(2), q(2), q(3))
        padd(q(0), q(0), q(2))
        padd(vA, vA, q(0))
        a("s_nop 0")
        while k < G:
            F.wait(G + k); pv(k); k += 1
        st(5)
        a("s_cbranch_scc1 L_bs")
        a("s_nop 6")
        a("global_store_dwordx4 v%d, v[%d:%d], %s" % (vSt, vA, vA + 3, WS))
        st(7)
        if ST: a("s_branch L_diag")
        a("s_endpgm")
        a("L_bs:")
        a("s_lshl_b32 %s, 1, %s" % (sT0, sSP))
        a("s_lshl_b32 %s, %s, 4" % (sT1, sH))
        a("v_mov_b32 v2, %s" % sT0)
        a("v_mov_b32 v3, %s" % sT1)
        a("s_nop 3")
        a("global_store_dwordx4 v%d, v[%d:%d], %s offset:%d sc1" % (vSt, vA, vA + 3, WS, SLOW))
        a("s_waitcnt vmcnt(0)")
        a("s_mov_b64 exec, 1")
        a("global_atomic_or v3, v2, %s offset:4 sc1" % DBG)
        if ST: a("s_branch L_diag")
        a("s_endpgm")

    def helper():
        a("L_helper:")
        if hprio: a("s_setprio %d" % hprio)
        a("s_load_dwordx8 s[12:19], s[0:1], 32")
        a("s_load_dwordx2 s[20:21], s[0:1], 64")
        a("v_and_b32 v1, 63, v0")
        a("s_lshr_b32 %s, %s, 4" % (sH, sCH))
        a("s_and_b32 %s, %s, 15" % (sSP, sCH))
        a("v_lshlrev_b32 v4, 4, v1")
        a("v_lshrrev_b32 v10, 5, v1")
        a("s_getreg_b32 %s, hwreg(HW_REG_XCC_ID, 0, 4)" % sIN)
        a("s_add_u32 %s, %s, 1" % (sIN, sIN))
        a("s_lshl_b32 %s, %s, 4" % (sT0, sH))
        a("v_mov_b32 v18, %s" % sT0)
        for i in range(2): a("v_mov_b64 v[%d:%d], -1" % (44 + 2 * i, 45 + 2 * i))
        for i in range(2): a("v_mov_b64 v[%d:%d], 0" % (24 + 2 * i, 25 + 2 * i))
        a("v_mov_b32 v20, 0xff7fffff")
        a("v_mov_b32 v19, %s" % sIN)
        hscat()
        a("s_lshl_b32 %s, %s, 8" % (sT1, sH))
        a("s_cmp_lg_u32 %s, 0" % sSP)
        a("s_waitcnt lgkmcnt(0)")
        st(1)
        a("s_cbranch_scc1 L_np")
        a("v_lshl_add_u32 v11, v1, 2, %s" % sCO)
        a("global_store_dword v11, v44, %s offset:%d" % (WS, HDR))
        a("s_waitcnt vmcnt(0)")
        a("s_mov_b64 exec, 1")
        if not dg & 1: a("global_store_dword v18, v19, %s %s" % (DBG, flpol))
        a("s_mov_b64 exec, -1")
        a("global_load_dword v52, v11, %s offset:%d sc1" % (WS, HDR))
        a("L_np:")
        st(2)
        a("s_cmp_lg_u32 %s, %d" % (sSP, treesp))
        a("s_cbranch_scc1 L_nt")
        a("global_load_ushort v30, v24, %s" % MK)
        a("v_or_b32 v11, %s, v5" % sT1)
        a("global_load_dwordx4 v[36:39], v11, %s" % KT)
        a("v_bfe_u32 v12, v1, 3, 1")
        a("v_lshl_add_u32 v11, v12, 8, v11")
        a("v_add_u32 v11, %s, v11" % sT1)
        a("global_load_dwordx4 v[40:43], v11, %s" % QS)
        a("v_and_b32 v11, 15, v1")
        a("v_bfe_u32 v12, v1, 4, 1")
        a("v_lshl_add_u32 v11, v11, 1, v12")
        a("v_lshl_add_u32 v11, v11, 3, %s" % sT1)
        a("global_load_dwordx2 v[28:29], v11, %s" % VT)
        a("s_mov_b32 %s, 0x%08x" % (sC, f2u(C_QK)))
        a("s_waitcnt vmcnt(0)")
        a("v_mfma_f32_16x16x32_bf16 v[32:35], v[36:39], v[40:43], 0")
        a("v_lshlrev_b32 v30, 16, v30")
        a("v_sub_f32 v11, 1.0, v30")
        a("v_mul_f32 v11, 0x%08x, v11" % f2u(C_MASK))
        a("v_lshlrev_b32 v24, 16, v28")
        a("v_and_b32 v25, 0xffff0000, v28")
        a("v_lshlrev_b32 v26, 16, v29")
        a("v_and_b32 v27, 0xffff0000, v29")
        a("v_cmp_gt_u32 vcc, 32, v1")
        a("v_add_f32_dpp v33, v32, v33 %s" % dpp(0))
        a("v_add_f32_dpp v35, v34, v35 %s" % dpp(2))
        a("s_nop 0")
        a("v_add_f32_dpp v32, v33, v35 %s" % dpp(1))
        a("v_fma_f32 v32, v32, %s, v11" % sC)
        a("s_nop 1")
        a("v_mov_b32_dpp v33, v32 row_newbcast:3 %s" % full)
        a("v_mov_b32_dpp v34, v32 row_newbcast:11 %s" % full)
        a("v_cndmask_b32 v20, v34, v33, vcc")
        a("L_nt:")
        a("v_lshlrev_b32 v6, 5, v10")
        a("ds_write_b32 v6, v20 offset:%d" % (LM + 16))
        a("s_mov_b32 %s, %d" % (sT1, tries - 1))
        a("s_waitcnt vmcnt(0) lgkmcnt(0)")
        if noA0 == 1:
            a("s_sleep 100")
        elif noA0 > 1:
            for _ in range(noA0):
                a("global_load_dword v52, v18, %s" % QS); a("s_waitcnt vmcnt(0)")
        else: a("s_barrier")
        a("L_fl:")
        if not dg & 2: a("global_load_dword v%d, v18, %s sc1" % (53 if dg & 1 else 19, DBG))
        a("s_waitcnt vmcnt(0)")
        a("v_readfirstlane_b32 %s, v19" % sT0)
        a("s_nop 0")
        a("s_cmp_lg_u32 %s, 0" % sT0)
        a("s_cbranch_scc1 L_fl2")
        a("s_sub_u32 %s, %s, 1" % (sT1, sT1))
        a("s_cbranch_scc0 L_fl")
        a("L_fl2:")
        a("s_cmp_eq_u32 %s, %s" % (sT0, sIN))
        a("s_cselect_b32 %s, %d, 0" % (sFL, 1 if fast else 0))
        if slowsel is not None:
            a("s_lshr_b32 %s, 0x%x, %s" % (sT0, slowsel, sSP))
            a("s_andn2_b32 %s, %s, %s" % (sFL, sFL, sT0))
        a("s_cmp_eq_u32 %s, 0" % sSP)
        a("s_cselect_b32 %s, 1, %s" % (sFL, sFL))
        st(3)
        a("v_mov_b32 v12, %s" % sFL)
        a("v_mov_b32 v13, 0")
        a("ds_write_b32 v13, v12 offset:%d" % LROLE)
        if cm:
            a("s_lshl_b32 %s, %s, 6" % (sT0, sSP)); a("s_or_b32 %s, %s, %s" % (sT0, sT0, sCO))
            a("v_lshrrev_b32 v8, 2, v1")
            vscat(9, 8, sm, sT0, 7)
            a("v_and_b32 v11, 48, v4"); a("v_or_b32 v11, v11, v9")
        else:
            sscat(sT0, sSP, sm, sCO)
            a("v_add_u32 v11, %s, v4" % sT0)
        a("s_lshl_b32 %s, %s, 4" % (sT0, sSP))
        a("s_add_u32 %s, %s, %s" % (sT0, sT0, sCO))
        a("v_lshl_add_u32 v21, v10, 3, %s" % sT0)
        a("s_cmp_eq_u32 %s, 0" % sFL)
        a("s_cbranch_scc1 L_nomk")
        if not dg & 4: a("global_store_dwordx4 v11, v[44:47], %s" % WS)
        if fill & 1: a("global_load_dwordx4 v[48:51], v11, %s sc1" % WS)
        if fill & 4:
            sscat(sT0, sSP, sm, sCO)
            a("v_add_u32 v11, %s, v4" % sT0)
            a("global_load_dwordx4 v[48:51], v11, %s sc1" % WS)
            a("s_cmp_eq_u32 %s, 0" % sFL)
        a("L_nomk:")
        a("s_barrier")
        a("ds_read_b128 v[12:15], v6 offset:%d" % LM)
        a("s_waitcnt lgkmcnt(0)")
        a("v_max3_f32 v16, v12, v13, v14")
        a("v_max3_f32 v16, v16, v15, v20")
        a("v_sub_f32 v20, v20, v16")
        a("v_exp_f32 v20, v20")
        a("s_nop 0")
        for i in range(4): a("v_mul_f32 v%d, v20, v%d" % (24 + i, 24 + i))
        a("ds_write_b128 v4, v[24:27] offset:%d" % (FIN * 1024))
        a("s_waitcnt lgkmcnt(0)")
        st(4)
        a("s_barrier")
        a("ds_read_b128 v[12:15], v6 offset:%d" % LL)
        a("s_waitcnt lgkmcnt(0)")
        a("v_add_f32 v12, v12, v13")
        a("v_add_f32 v14, v14, v15")
        a("v_add_f32 v12, v12, v14")
        a("v_add_f32 v17, v12, v20")
        a("s_waitcnt vmcnt(0)")
        a("s_cbranch_scc1 L_hs")
        a("global_store_dwordx2 v21, v[16:17], %s offset:%d" % (WS, HDR))
        st(5)
        a("s_branch L_he")
        a("L_hs:")
        a("global_store_dwordx2 v21, v[16:17], %s offset:%d sc1" % (WS, SLOW + HDR))
        a("s_waitcnt vmcnt(0)")
        a("L_he:")
        if ST:
            a("s_barrier"); a("s_barrier"); a("s_branch L_diag")
        a("s_endpgm")
    for c in order: {"h": helper, "p": poller, "f": finisher}[c]()
    if ST:
        a("L_diag:")
        a("s_mov_b64 exec, -1")
        if ST == "st": st0.dump(sW, NW + 1, WS)
        else: st0.encode(int(ST), k=enc_k)
        a("s_endpgm")
    return wrap(a.text(), NWG, (NW + 1) * 64, LDS, nv, nsgpr=96 if ST else 64)

if __name__ == "__main__":
    kw = {}
    for x in sys.argv[1:]:
        k, v = x.split("=")
        try: v = eval(v)
        except: pass
        kw[k] = v
    if "ST" in kw and kw["ST"] != "st": kw["ST"] = str(kw["ST"])
    sys.stdout.write(gen(**kw))
```

```python
import sys
from common import *

def conv(p):
    t = list(p[2]) + list(p[3])
    return (p[0], p[1], (t[3], t[4]), (t[0], t[1], t[2], t[5], t[6]), p[4])
P1B = conv(((521,1024,1041,144),(0,1105,0,269),(1045,3609),(2308,1552,2372,256,4621),(2097,2)))
def gen(ST=False, pol="nt", fast=1, outpol="", stamps=None, enc_k=10, tries=4, slowsel=None, NP=4, treesp=1, RY=0x400000,
        sm=(15, 16, 17, 18), hm=(19, 20, 21, 22), pat=P1B, order="hpf", na=4, nb=2, rel=8, A0=4, asym=2, D=8):
    masked = 0; cm = 1; fill = 1; hmask = None; dg = 0; hprio = 0; flpol = "sc1"
    NW, G, NWG = 4, 32, 256
    FIN = NW - 1
    DV = [8] * 8 + [D] * 56
    a = Asm()
    st0 = Stamps(a, ST, base=64)
    def st(i):
        if stamps is None or i in stamps: st0(i)
    QS, KS, VS, KT = "s[4:5]", "s[6:7]", "s[8:9]", "s[10:11]"
    VT, MK, OUT, DBG, WS = "s[12:13]", "s[14:15]", "s[16:17]", "s[18:19]", "s[20:21]"
    sW, sH, sSP, sC, sIN, sFL, sT0, sT1, sCH = "s28", "s29", "s30", "s31", "s32", "s33", "s34", "s35", "s36"
    sDN, sRY, sCL, sCO = "s38", "s39", "s40", "s41"
    vKo, vVo = 2, 3
    vLin, vSt, vMw, vMr = 4, 5, 6, 7
    vA = 8
    vHa, vBa, vOa, vRo = 12, 13, 14, 15
    vH = 16
    vM = 20
    vT = 24
    vP = 32
    vR = 48
    vQ0, vQ1 = 104, 108
    NT = 8
    vD = 112
    nv = 240
    vX = vP
    dpp = lambda p: "quad_perm:[%d,%d,%d,%d] row_mask:0xf bank_mask:0xf" % (p, p, p, p)
    full = "row_mask:0xf bank_mask:0xf"
    LM = 4096
    LL = LM + 64
    LROLE = LL + 64
    LDS = LROLE + 16
    HDR = 1024
    SLOW = 2048
    assert min(sm + hm) >= 12
    def runs(m):
        out = []; i = 0
        while i < 4:
            j = i
            while j + 1 < 4 and m[j + 1] == m[j] + 1: j += 1
            out.append((i, j - i + 1, m[i])); i = j + 1
        return out
    def sscat(dst, src, m, base=None):
        first = True
        for (o, n, p) in runs(m):
            t = dst if first else "s42"
            if n == 4: a("s_lshl_b32 %s, %s, %d" % (t, src, p))
            else:
                a("s_bfe_u32 %s, %s, 0x%x" % (t, src, (n << 16) | o)); a("s_lshl_b32 %s, %s, %d" % (t, t, p))
            if not first: a("s_or_b32 %s, %s, s42" % (dst, dst))
            first = False
        if base: a("s_or_b32 %s, %s, %s" % (dst, dst, base))
    def hscat():
        if hmask is None: return sscat(sCO, sH, hm)
        a("s_mov_b32 %s, 0" % sCO)
        for k, m in enumerate(hmask):
            a("s_bitcmp1_b32 %s, %d" % (sH, k)); a("s_cselect_b32 s42, 0x%x, 0" % m); a("s_xor_b32 %s, %s, s42" % (sCO, sCO))
    def vscat(dst, src, m, base, tmp):
        cur = base
        for (o, n, p) in runs(m):
            if n == 4: a("v_lshl_or_b32 v%d, v%d, %d, %s" % (dst, src, p, cur))
            else:
                a("v_bfe_u32 v%d, v%d, %d, %d" % (tmp, src, o, n)); a("v_lshl_or_b32 v%d, v%d, %d, %s" % (dst, tmp, p, cur))
            cur = "v%d" % dst

    a("s_load_dwordx8 s[4:11], s[0:1], 0")
    st0.init()
    a("s_cmp_ge_u32 s2, %d" % NWG)
    a("s_cbranch_scc1 L_exit")
    rt = pat == "rt"
    if rt:
        a("s_load_dwordx16 s[44:59], s[0:1], 72")
        a("s_load_dwordx2 s[60:61], s[0:1], 136")
    a("v_lshrrev_b32 v4, 6, v0")
    a("v_and_b32 v2, 3, v0")
    a("v_bfe_u32 v5, v0, 4, 2")
    a("v_readfirstlane_b32 %s, v4" % sW)
    a("v_lshlrev_b32 v2, 4, v2")
    a("v_lshl_or_b32 v5, v5, 6, v2")
    a("v_bfe_i32 v6, v0, 2, 1")
    a("v_bfe_i32 v7, v0, 3, 1")
    if rt:
        a("s_waitcnt lgkmcnt(0)")
        a("s_add_u32 %s, s2, s59" % sT0); a("s_and_b32 %s, %s, 7" % (sT0, sT0))
    else:
        a("s_and_b32 %s, s2, 7" % sT0)
    a("s_lshr_b32 %s, s2, 3" % sT1)
    a("s_lshl_b32 %s, %s, 5" % (sT0, sT0))
    a("s_or_b32 %s, %s, %s" % (sCH, sT0, sT1))
    a("s_lshr_b32 %s, %s, 4" % (sH, sCH))
    if rt:
        a("s_lshr_b32 %s, s59, 8" % sT1); a("s_lshl_b32 s43, %s, %s" % (sH, sT1))
        col = lambda k: "s%d" % (44 + k)
    else:
        a("s_lshl_b32 s43, %s, 21" % sH)
        cols = [c << 8 for c in list(pat[0]) + list(pat[1]) + list(pat[2])]
        col = lambda k: "0x%x" % cols[k]
        a("s_mov_b32 s60, 0x%x" % (pat[4][0] << 8)); a("s_mov_b32 s61, 0x%x" % (pat[4][1] << 8))
        x = 0
        for k in range(5):
            x ^= pat[3][k]; a("s_mov_b32 s%d, 0x%x" % (54 + k, x << 8))
    a("v_and_b32 v6, s60, v6"); a("v_and_b32 v7, s61, v7")
    a("v_xor_b32 v2, v6, v7"); a("v_xor_b32 v2, v2, v5")
    for k in range(10):
        if not rt and cols[k] == 0: continue
        a("s_bitcmp1_b32 %s, %d" % ((sCH, k) if k < 8 else (sW, k - 8)))
        a("s_cselect_b32 %s, %s, 0" % (sT1, col(k)))
        a("s_xor_b32 s43, s43, %s" % sT1)
    fa = [vT + k for k in range(7)] + [vKo]
    a("v_xor_b32 v%d, s43, v2" % fa[0])
    for g in range(1, 8):
        a("v_xor_b32 v%d, s%d, v%d" % (fa[g], 54 + (g & -g).bit_length() - 1, fa[g - 1]))
    for k in range(3):
        a("s_cmp_gt_u32 %s, %d" % (sW, k)); a("s_cbranch_scc0 L_go"); a("s_barrier")
    a("s_cmp_eq_u32 %s, %d" % (sW, NW))
    a("s_cbranch_scc1 L_helper")
    a("L_go:")
    a("s_cmp_lt_u32 %s, 3" % sW)
    a("s_waitcnt lgkmcnt(0)")
    st(1)
    class Stream:
        def __init__(s): s.cur = {vKo: 0, vVo: 0}; s.ops = []; s.done = -1
        def copy(s):
            t = Stream(); t.cur = dict(s.cur); t.ops = list(s.ops); t.done = s.done; return t
        def issue(s, i, sep=False):
            g = i % G
            vo, base = (vKo, KS) if i < G else (vVo, VS)
            if i < 8: vo = fa[i]
            elif g: a("v_xor_b32 v%d, s%d, v%d" % (vo, 54 + (g & -g).bit_length() - 1, vo))
            a("global_load_dwordx4 v[%d:%d], v%d, %s %s" % (vD + 4 * g, vD + 4 * g + 3, vo, base, pol))
            s.ops.append(i)
        def wait(s, x):
            if x > s.done:
                a("s_waitcnt vmcnt(%d)" % (len(s.ops) - 1 - s.ops.index(x))); s.done = x
                return True
            return False
        def slot(s, i):
            w = i - DV[i] >= 0 and s.wait(i - DV[i])
            s.issue(i, sep=(not w and 0 < i < D))
    S = Stream()
    def qloads():
        a("s_load_dwordx8 s[12:19], s[0:1], 32")
        a("s_load_dwordx2 s[20:21], s[0:1], 64")
        a("v_bfe_u32 v6, v0, 3, 1")
        a("v_lshl_or_b32 v7, v6, 8, v5")
        a("s_lshl_b32 %s, %s, 9" % (sT1, sH))
        a("v_or_b32 v7, %s, v7" % sT1)
        for i in range(4): a("v_mov_b64 v[%d:%d], 0" % (vQ0 + 2 * i, vQ0 + 2 * i + 1))
        a("s_mov_b32 exec_lo, 0x0f0f0f0f"); a("s_mov_b32 exec_hi, exec_lo")
        a("global_load_dwordx4 v[%d:%d], v7, %s" % (vQ0, vQ0 + 3, QS))
        a("s_not_b64 exec, exec")
        a("global_load_dwordx4 v[%d:%d], v7, %s" % (vQ1, vQ1 + 3, QS))
        a("s_mov_b64 exec, -1")
        S.ops.extend(["Q0", "Q1"])
    def consts():
        t = vT
        a("v_and_b32 v1, 63, v0")
        a("v_lshlrev_b32 v%d, 4, v1" % vLin)
        if True:
            a("v_bfe_i32 v%d, v0, 4, 1" % t); a("v_bfe_i32 v%d, v0, 5, 1" % (t + 1))
            a("v_and_b32 v%d, s60, v%d" % (t, t)); a("v_and_b32 v%d, s61, v%d" % (t + 1, t + 1))
            a("v_and_b32 v%d, 0xf0, v%d" % (vVo, vLin)); a("v_xor_b32 v%d, v%d, v%d" % (t, t, t + 1))
            a("v_xor_b32 v%d, s43, v%d" % (vVo, vVo)); a("v_xor_b32 v%d, v%d, v%d" % (vVo, vVo, t))
        a("v_lshlrev_b32 v%d, 5, v6" % vMr)
        a("s_lshl_b32 %s, %s, 2" % (sT0, sW))
        a("v_add_u32 v%d, %s, v%d" % (vMw, sT0, vMr))
        a("s_and_b32 %s, %s, 15" % (sSP, sCH))
        a("v_lshlrev_b32 v%d, 4, v0" % (vH + 3))
        hscat()
        a("s_and_b32 %s, %s, 8" % (sT0, sSP))
        a("s_add_u32 %s, %s, %s" % (sT0, sT0, sCO))
        a("v_lshrrev_b32 v%d, 2, v1" % vBa)
        a("v_lshl_add_u32 v%d, v%d, 4, %s" % (vH + 2, vBa, sT0))
        a("s_mov_b32 %s, 0x%08x" % (sC, f2u(C_QK)))
        a("v_and_b32 v%d, 1, v1" % t)
        a("v_lshlrev_b32 v%d, 4, v%d" % (t, t))
        a("v_mov_b32 v%d, 0xffff" % (t + 1))
        a("v_lshlrev_b32 v%d, v%d, v%d" % (t, t, t + 1))
        a("s_mov_b32 vcc_lo, 0x03030303"); a("s_mov_b32 vcc_hi, vcc_lo")
        for i in range(4):
            a("v_cndmask_b32 v%d, 0, v%d, vcc" % (vM + i, t))
            if i < 3: a("s_lshl_b64 vcc, vcc, 2")
        a("s_cmp_lt_u32 %s, %d" % (sW, asym))
        a("s_cselect_b64 vcc, -1, 0")
    tile = lambda p: vR + 4 * (p % NT)
    def qk(g):
        d = tile(g // 2)
        q = (vQ0, vQ1)[g & 1]
        a("v_mfma_f32_16x16x32_bf16 v[%d:%d], v[%d:%d], v[%d:%d], %s" % (d, d + 3, vD + 4 * g, vD + 4 * g + 3, q, q + 3,
            "0" if g % 2 == 0 else "v[%d:%d]" % (d, d + 3)))
    t0, t1, t2 = vT, vT + 1, vT + 2
    def red2(p):
        for x in (p, p + 1):
            b = tile(x)
            a("v_add_f32_dpp v%d, v%d, v%d %s" % (b + 1, b, b + 1, dpp(0)))
            a("v_add_f32_dpp v%d, v%d, v%d %s" % (b + 3, b + 2, b + 3, dpp(2)))
        for x in (p, p + 1):
            b = tile(x)
            a("v_add_f32_dpp v%d, v%d, v%d %s" % (vP + x, b + 1, b + 3, dpp(1)))
        if p == 0: a("v_max_f32 v%d, v%d, v%d" % (t0, vP, vP + 1))
        else: a("v_max3_f32 v%d, v%d, v%d, v%d" % (t0, t0, vP + p, vP + p + 1))
    P = G // 2
    def soft1():
        a("v_mov_b32 v%d, v%d" % (t1, t0))
        a("s_nop 1")
        a("v_permlane32_swap_b32 v%d, v%d" % (t0, t1))
        a("v_max_f32 v%d, v%d, v%d" % (t0, t0, t1))
        a("v_mov_b32 v%d, v%d" % (t1, t0))
        a("s_nop 1")
        a("v_permlane16_swap_b32 v%d, v%d" % (t0, t1))
        a("v_max_f32 v%d, v%d, v%d" % (t0, t0, t1))
        a("s_nop 1")
        a("v_mov_b32_dpp v%d, v%d %s" % (t1, t0, dpp(3)))
        a("s_nop 1")
        a("v_max_f32_dpp v%d, v%d, v%d row_half_mirror %s" % (t0, t1, t1, full))
        a("v_mul_f32 v%d, %s, v%d" % (t0, sC, t0))
        a("ds_write_b32 v%d, v%d offset:%d" % (vMw, t0, LM))
    def soft2():
        L = []
        e = L.append
        e("s_waitcnt lgkmcnt(0)")
        e("v_max3_f32 v%d, v%d, v%d, v%d" % (t0, vT + 4, vT + 5, vT + 6))
        e("v_max3_f32 v%d, v%d, v%d, v%d" % (t0, t0, vT + 7, vT + 3))
        for p in range(P): e("v_fma_f32 v%d, v%d, %s, -v%d" % (vP + p, vP + p, sC, t0))
        for p in range(P): e("v_exp_f32_dpp v%d, v%d %s" % (vP + p, vP + p, dpp(3)))
        e("v_add_f32 v%d, v%d, v%d" % (t1, vP, vP + 1))
        for p in range(2, P): e("v_add_f32 v%d, v%d, v%d" % (t1, t1, vP + p))
        cv = lambda p: e("v_cvt_pk_bf16_f32 v%d, v%d, v%d" % (vP + p, vP + p, vP + p))
        e("v_mov_b32 v%d, v%d" % (t2, t1))
        cv(0); cv(1)
        e("v_permlane32_swap_b32 v%d, v%d" % (t1, t2))
        e("v_add_f32 v%d, v%d, v%d" % (t1, t1, t2))
        e("v_mov_b32 v%d, v%d" % (t2, t1))
        cv(2); cv(3)
        e("v_permlane16_swap_b32 v%d, v%d" % (t1, t2))
        e("v_add_f32 v%d, v%d, v%d" % (t2, t1, t2))
        cv(4); cv(5)
        e("v_add_f32_dpp v%d, v%d, v%d row_half_mirror %s" % (t1, t2, t2, full))
        e("ds_write_b32 v%d, v%d offset:%d" % (vMw, t1, LL))
        for p in range(6, P): cv(p)
        return L
    def ands(g):
        src = vP + g // 2
        dst = vR + 4 * (g % 16)
        for i in range(4):
            if (i >> 1) == (g & 1): a("v_and_b32 v%d, v%d, v%d" % (dst + i, src, vM + i))
            else: a("v_and_b32_dpp v%d, v%d, v%d row_half_mirror %s" % (dst + i, src, vM + i, full))
    def pv(g, zero=False):
        s = vR + 4 * (g % 16)
        a("v_mfma_f32_16x16x32_bf16 v[%d:%d], v[%d:%d], v[%d:%d], %s" % (vA, vA + 3, s, s + 3, vD + 4 * g, vD + 4 * g + 3,
            "0" if zero else "v[%d:%d]" % (vA, vA + 3)))

    nb_ = [0]
    def burst(r, bar=False):
        if bar:
            a("s_cbranch_vccnz L_ba%d" % r); a("s_barrier"); a("L_ba%d:" % r)
        for i in range(8 * r, 8 * r + 8): S.slot(i)
        if bar:
            a("s_cbranch_vccz L_bb%d" % r); a("s_barrier"); a("L_bb%d:" % r)
        if r: S.wait(8 * r - 1)
    for i in range(8):
        if i == rel:
            a("s_cbranch_scc0 L_r0"); a("s_barrier"); a("L_r0:")
        S.slot(i)
    for k in range(3):
        if k == 0 and rel < 8: continue
        if k: a("s_cmp_lt_u32 %s, %d" % (sW, 3 - k))
        a("s_cbranch_scc0 L_go2"); a("s_barrier")
    a("L_go2:")
    qloads(); consts(); st(2)
    burst(1)
    burst(2)
    for g in range(16): qk(g)
    red2(0); red2(2); red2(4); red2(6)
    burst(3, A0 == 3)
    for g in range(16, 24): qk(g)
    burst(4, A0 == 4)
    for g in range(24, 32): qk(g)
    st(3)
    red2(8); red2(10); red2(12); red2(14)
    soft1()
    a("s_waitcnt lgkmcnt(0)")
    burst(5, True)
    a("ds_read_b128 v[%d:%d], v%d offset:%d" % (vT + 4, vT + 7, vMr, LM))
    a("ds_read_b32 v%d, v%d offset:%d" % (vT + 3, vMr, LM + 16))
    for x in soft2(): a(x)
    for g in range(16): ands(g)
    for g in range(8): pv(g, g == 0)
    a("s_waitcnt lgkmcnt(0)")
    st(4)
    burst(6, True)
    a("v_mov_b32 v%d, 0" % vRo)
    a("ds_read_b32 v%d, v%d offset:%d" % (vRo, vRo, LROLE))
    for g in range(8, 16): pv(g)
    for g in range(16, 32): ands(g)
    a("s_waitcnt lgkmcnt(0)")
    a("v_readfirstlane_b32 %s, v%d" % (sFL, vRo))
    burst(7)
    st(12)
    a("s_cmp_lg_u32 %s, 0" % sW)
    a("s_cbranch_scc1 L_nh")
    a("global_load_dwordx2 v[%d:%d], v%d, %s offset:%d sc1" % (vH, vH + 1, vH + 2, WS, HDR))
    a("L_nh:")
    a("s_cselect_b32 %s, 0, %s" % (sT0, sFL))
    for g in range(16, 24): pv(g)
    a("s_cmp_eq_u32 %s, %d" % (sW, FIN))
    a("s_cbranch_scc1 L_fin")
    F = S.copy()
    a("s_cmp_lg_u32 %s, 0" % sT0)
    for g in range(24, 32):
        S.wait(g + G); pv(g)
    st(5)
    a("s_nop 7")
    a("ds_write_b128 v%d, v[%d:%d]" % (vH + 3, vA, vA + 3))
    a("s_cbranch_scc1 L_poll")
    a("s_waitcnt lgkmcnt(0)")
    a("s_barrier")
    a("L_end:")
    if ST: a("s_branch L_diag")
    a("L_exit:")
    a("s_endpgm")

    def poller():
        vB = vR
        t = vT
        a("L_poll:")
        a("v_and_b32 v%d, 3, v1" % (t + 3))
        vscat(vHa, vBa, sm, sCO, t)
        a("v_lshl_add_u32 v%d, v%d, 4, v%d" % (vBa, t + 3, vHa))
        a("v_lshrrev_b32 v%d, 4, v1" % t)
        a("v_lshl_add_u32 v%d, v%d, 3, v%d" % (t, t + 3, t))
        a("s_lshl_b32 %s, %s, 9" % (sT1, sH))
        a("v_lshl_add_u32 v%d, v%d, 1, %s" % (vOa, t, sT1))
        a("s_mov_b32 %s, 0" % sCL)
        a("s_cmp_eq_u32 %s, 0" % sSP)
        a("s_cselect_b32 %s, 0, -1" % sDN)
        a("s_mov_b32 %s, 0x%x" % (sRY, RY))
        a("s_waitcnt lgkmcnt(0)")
        a("L_col:")
        if cm:
            sscat(sT0, sSP, sm, sCO)
            a("v_add_u32 v%d, %s, v%d" % (vT + 2, sT0, vLin))
            a("s_lshl_b32 %s, %s, 6" % (sT0, sSP))
        else:
            a("s_lshl_b32 %s, %s, 6" % (sT0, sSP))
            a("v_add_u32 v%d, %s, v%d" % (vT + 2, sT0, vBa))
        a("s_and_b32 %s, %s, 0xc0" % (sT0, sT0))
        a("s_mul_i32 %s, %s, 34" % (sT1, sSP))
        a("s_and_b32 %s, %s, 0x108" % (sT1, sT1))
        a("s_or_b32 %s, %s, %s" % (sT0, sT0, sT1))
        a("v_add_u32 v%d, %s, v%d" % (vT + 3, sT0, vOa))
        a("v_mov_b32 v%d, -1" % vB)
        a("L_hc:")
        a("v_max_u32 v%d, v%d, v%d" % (vT + 4, vH, vH + 1))
        a("v_cmp_eq_u32 vcc, -1, v%d" % (vT + 4))
        a("s_cbranch_vccnz L_hr")
        a("L_hok:")
        st(8)
        for r in range(1, 4): a("v_mov_b32 v%d, -1" % (vB + r))
        def allred(op, x, src):
            y = x + 1
            a("%s_dpp v%d, v%d, v%d row_ror:8 %s" % (op, x, src, src, full))
            a("s_nop 1")
            a("%s_dpp v%d, v%d, v%d row_ror:4 %s" % (op, x, x, x, full))
            a("v_mov_b32 v%d, v%d" % (y, x))
            a("s_nop 1")
            a("v_permlane16_swap_b32 v%d, v%d" % (x, y))
            a("%s v%d, v%d, v%d" % (op, x, x, y))
            a("v_mov_b32 v%d, v%d" % (y, x))
            a("s_nop 1")
            a("v_permlane32_swap_b32 v%d, v%d" % (x, y))
            a("%s v%d, v%d, v%d" % (op, x, x, y))
        allred("v_max_f32", vT + 4, vH)
        a("v_sub_f32 v%d, v%d, v%d" % (vH, vH, vT + 4))
        a("v_exp_f32 v%d, v%d" % (vH, vH))
        a("s_nop 0")
        a("v_mul_f32 v%d, v%d, v%d" % (vH + 1, vH, vH + 1))
        a("s_nop 1")
        allred("v_add_f32", vT + 4, vH + 1)
        a("v_rcp_f32 v%d, v%d" % (vT + 4, vT + 4))
        a("s_nop 0")
        a("v_mul_f32 v%d, v%d, v%d" % (vH, vH, vT + 4))
        a("s_cmp_eq_u32 %s, 0" % sFL)
        a("s_cbranch_scc1 L_bp")
        a("s_mov_b32 %s, 0" % sFL)
        a("s_barrier")
        st(9)
        a("L_bp:")
        a("global_load_dwordx4 v[%d:%d], v%d, %s sc1" % (vB, vB + 3, vT + 2, WS))
        a("s_sub_u32 %s, %s, 1" % (sRY, sRY))
        a("s_cbranch_scc1 L_bok")
        a("s_waitcnt vmcnt(%d)" % (NP - 1))
        a("v_max3_u32 v%d, v%d, v%d, v%d" % (vT + 4, vB, vB + 1, vB + 2))
        a("v_max_u32 v%d, v%d, v%d" % (vT + 4, vT + 4, vB + 3))
        a("v_cmp_eq_u32 vcc, -1, v%d" % (vT + 4))
        if masked:
            a("s_and_b64 exec, exec, vcc")
            a("s_cbranch_scc1 L_bp")
            a("L_bok:")
            a("s_mov_b64 exec, -1")
        else:
            a("s_cbranch_vccnz L_bp")
            a("L_bok:")
        st(10)
        for r in (0, 2, 1, 3):
            a("v_mul_f32 v%d, v%d, v%d" % (vA + r, vH, vB + r))
        a("s_cmp_eq_u32 %s, 0" % sCL)
        a("v_permlane32_swap_b32 v%d, v%d" % (vA, vA + 2))
        a("v_permlane32_swap_b32 v%d, v%d" % (vA + 1, vA + 3))
        a("v_add_f32 v%d, v%d, v%d" % (vA, vA, vA + 2))
        a("v_add_f32 v%d, v%d, v%d" % (vA + 1, vA + 1, vA + 3))
        a("s_nop 1")
        a("v_permlane16_swap_b32 v%d, v%d" % (vA, vA + 1))
        a("v_add_f32 v%d, v%d, v%d" % (vA, vA, vA + 1))
        a("s_nop 1")
        a("v_add_f32_dpp v%d, v%d, v%d row_ror:8 %s" % (vA, vA, vA, full))
        a("s_nop 1")
        a("v_add_f32_dpp v%d, v%d, v%d row_ror:4 %s" % (vA, vA, vA, full))
        a("v_cvt_pk_bf16_f32 v%d, v%d, v%d" % (vA, vA, vA))
        st(11)
        a("global_store_short v%d, v%d, %s %s" % (vT + 3, vA, OUT, outpol))
        a("s_cbranch_scc0 L_more")
        if ST: a("s_branch L_diag")
        a("s_endpgm")
        a("L_more:")
        a("s_max_i32 %s, %s, 64" % (sRY, sRY))
        a("s_ff1_i32_b32 %s, %s" % (sSP, sCL))
        a("s_bitset0_b32 %s, %s" % (sCL, sSP))
        a("s_and_b32 %s, %s, 8" % (sT0, sSP))
        a("v_and_b32 v%d, -9, v%d" % (vH + 2, vH + 2))
        a("v_or_b32 v%d, %s, v%d" % (vH + 2, sT0, vH + 2))
        a("global_load_dwordx2 v[%d:%d], v%d, %s offset:%d sc1" % (vH, vH + 1, vH + 2, WS, HDR))
        a("s_waitcnt vmcnt(0)")
        a("s_branch L_col")
        a("L_hr:")
        a("s_cmp_eq_u32 %s, 0" % sFL)
        a("s_cbranch_scc1 L_hr2")
        a("s_mov_b32 %s, 0" % sFL)
        a("s_barrier")
        a("L_hr2:")
        a("s_sub_u32 %s, %s, 1" % (sRY, sRY))
        a("s_cbranch_scc1 L_hto")
        a("s_cmp_eq_u32 %s, -1" % sDN)
        a("s_cbranch_scc1 L_hl")
        a("s_lshl_b32 %s, %s, 4" % (sT0, sH))
        a("v_mov_b32 v%d, %s" % (vT + 4, sT0))
        a("global_load_dword v%d, v%d, %s offset:4 sc1" % (vT + 4, vT + 4, DBG))
        a("s_waitcnt vmcnt(0)")
        a("v_readfirstlane_b32 %s, v%d" % (sT0, vT + 4))
        a("s_nop 0")
        a("s_andn2_b32 %s, %s, %s" % (sT0, sT0, sDN))
        a("s_cbranch_scc0 L_hl")
        a("s_ff1_i32_b32 %s, %s" % (sT0, sT0))
        a("s_bitset1_b32 %s, %s" % (sDN, sT0))
        a("s_bitset1_b32 %s, %s" % (sCL, sT0))
        if cm:
            a("s_lshl_b32 %s, %s, 6" % (sT1, sT0))
            a("v_add_u32 v%d, %s, v%d" % (vT + 4, sT1, vBa))
        else:
            sscat(sT1, sT0, sm, sCO)
            a("v_add_u32 v%d, %s, v%d" % (vT + 4, sT1, vLin))
        a("s_lshl_b32 %s, %s, 4" % (sT0, sT0))
        a("s_add_u32 %s, %s, %s" % (sT0, sT0, sCO))
        a("v_mov_b32 v%d, %s" % (vT + 5, sT0))
        a("global_load_dwordx4 v[%d:%d], v%d, %s offset:%d sc1" % (vB + 4, vB + 7, vT + 4, WS, SLOW))
        a("global_load_dwordx4 v[%d:%d], v%d, %s offset:%d sc1" % (vB + 8, vB + 11, vT + 5, WS, SLOW + HDR))
        a("s_waitcnt vmcnt(0)")
        a("global_store_dwordx4 v%d, v[%d:%d], %s" % (vT + 4, vB + 4, vB + 7, WS))
        a("s_waitcnt vmcnt(0)")
        a("global_store_dwordx4 v%d, v[%d:%d], %s offset:%d" % (vT + 5, vB + 8, vB + 11, WS, HDR))
        a("L_hl:")
        a("global_load_dwordx2 v[%d:%d], v%d, %s offset:%d sc1" % (vH, vH + 1, vH + 2, WS, HDR))
        a("s_waitcnt vmcnt(0)")
        a("s_branch L_hc")
        a("L_hto:")
        a("s_mov_b32 %s, 64" % sRY)
        a("s_branch L_hok")

    def finisher():
        q = lambda w: vX + 4 * w
        def padd(d, x, y):
            a("v_pk_add_f32 v[%d:%d], v[%d:%d], v[%d:%d]" % (d, d + 1, x, x + 1, y, y + 1))
            a("v_pk_add_f32 v[%d:%d], v[%d:%d], v[%d:%d]" % (d + 2, d + 3, x + 2, x + 3, y + 2, y + 3))
        a("L_fin:")
        a("ds_read_b128 v[%d:%d], v%d" % (q(3), q(3) + 3, vH + 3))
        if cm:
            a("s_lshl_b32 %s, %s, 6" % (sT0, sSP)); a("s_or_b32 %s, %s, %s" % (sT0, sT0, sCO))
            vscat(vHa, vBa, sm, sT0, vT)
            a("v_and_b32 v%d, 48, v%d" % (vSt, vLin)); a("v_or_b32 v%d, v%d, v%d" % (vSt, vSt, vHa))
        else:
            sscat(sT0, sSP, sm, sCO)
            a("v_add_u32 v%d, %s, v%d" % (vSt, sT0, vLin))
        a("s_cmp_eq_u32 %s, 0" % sFL)
        k = 24
        for _ in range(na):
            F.wait(G + k); pv(k); k += 1
        a("s_barrier")
        st(6)
        for w in range(3):
            a("ds_read_b128 v[%d:%d], v%d offset:%d" % (q(w), q(w) + 3, vLin, w * 1024))
        for _ in range(nb):
            if k < G: F.wait(G + k); pv(k); k += 1
        a("s_waitcnt lgkmcnt(1)"); padd(q(0), q(0), q(1))
        a("s_waitcnt lgkmcnt(0)"); padd(q(2), q(2), q(3))
        last = k == G
        if k < G - 1: F.wait(G + k); pv(k); k += 1
        padd(q(0), q(0), q(2))
        while k < G:
            F.wait(G + k); pv(k); k += 1
        st(5)
        if not last: a("s_nop 7")
        padd(vA, vA, q(0))
        a("s_cbranch_scc1 L_bs")
        a("global_store_dwordx4 v%d, v[%d:%d], %s" % (vSt, vA, vA + 3, WS))
        st(7)
        if ST: a("s_branch L_diag")
        a("s_endpgm")
        a("L_bs:")
        a("s_lshl_b32 %s, 1, %s" % (sT0, sSP))
        a("s_lshl_b32 %s, %s, 4" % (sT1, sH))
        a("v_mov_b32 v2, %s" % sT0)
        a("v_mov_b32 v3, %s" % sT1)
        a("s_nop 3")
        a("global_store_dwordx4 v%d, v[%d:%d], %s offset:%d sc1" % (vSt, vA, vA + 3, WS, SLOW))
        a("s_waitcnt vmcnt(0)")
        a("s_mov_b64 exec, 1")
        a("global_atomic_or v3, v2, %s offset:4 sc1" % DBG)
        if ST: a("s_branch L_diag")
        a("s_endpgm")

    def helper():
        a("L_helper:")
        if hprio: a("s_setprio %d" % hprio)
        a("s_load_dwordx8 s[12:19], s[0:1], 32")
        a("s_load_dwordx2 s[20:21], s[0:1], 64")
        a("v_and_b32 v1, 63, v0")
        a("s_and_b32 %s, %s, 15" % (sSP, sCH))
        a("v_lshlrev_b32 v4, 4, v1")
        a("v_lshrrev_b32 v10, 5, v1")
        a("s_getreg_b32 %s, hwreg(HW_REG_XCC_ID, 0, 4)" % sIN)
        a("s_add_u32 %s, %s, 1" % (sIN, sIN))
        a("s_lshl_b32 %s, %s, 4" % (sT0, sH))
        a("v_mov_b32 v18, %s" % sT0)
        for i in range(2): a("v_mov_b64 v[%d:%d], -1" % (44 + 2 * i, 45 + 2 * i))
        for i in range(2): a("v_mov_b64 v[%d:%d], 0" % (24 + 2 * i, 25 + 2 * i))
        a("v_mov_b32 v20, 0xff7fffff")
        a("v_mov_b32 v19, %s" % sIN)
        hscat()
        a("s_lshl_b32 %s, %s, 8" % (sT1, sH))
        a("s_cmp_lg_u32 %s, 0" % sSP)
        a("s_waitcnt lgkmcnt(0)")
        st(1)
        a("s_cbranch_scc1 L_np")
        a("v_lshl_add_u32 v11, v1, 2, %s" % sCO)
        a("global_store_dword v11, v44, %s offset:%d" % (WS, HDR))
        a("s_waitcnt vmcnt(0)")
        a("s_mov_b64 exec, 1")
        if not dg & 1: a("global_store_dword v18, v19, %s %s" % (DBG, flpol))
        a("s_mov_b64 exec, -1")
        a("global_load_dword v52, v11, %s offset:%d sc1" % (WS, HDR))
        a("L_np:")
        st(2)
        a("s_cmp_lg_u32 %s, %d" % (sSP, treesp))
        a("s_cbranch_scc1 L_nt")
        a("global_load_ushort v30, v24, %s" % MK)
        a("v_or_b32 v11, %s, v5" % sT1)
        a("global_load_dwordx4 v[36:39], v11, %s" % KT)
        a("v_bfe_u32 v12, v1, 3, 1")
        a("v_lshl_add_u32 v11, v12, 8, v11")
        a("v_add_u32 v11, %s, v11" % sT1)
        a("global_load_dwordx4 v[40:43], v11, %s" % QS)
        a("v_and_b32 v11, 15, v1")
        a("v_bfe_u32 v12, v1, 4, 1")
        a("v_lshl_add_u32 v11, v11, 1, v12")
        a("v_lshl_add_u32 v11, v11, 3, %s" % sT1)
        a("global_load_dwordx2 v[28:29], v11, %s" % VT)
        a("s_mov_b32 %s, 0x%08x" % (sC, f2u(C_QK)))
        a("s_waitcnt vmcnt(0)")
        a("v_mfma_f32_16x16x32_bf16 v[32:35], v[36:39], v[40:43], 0")
        a("v_lshlrev_b32 v30, 16, v30")
        a("v_sub_f32 v11, 1.0, v30")
        a("v_mul_f32 v11, 0x%08x, v11" % f2u(C_MASK))
        a("v_lshlrev_b32 v24, 16, v28")
        a("v_and_b32 v25, 0xffff0000, v28")
        a("v_lshlrev_b32 v26, 16, v29")
        a("v_and_b32 v27, 0xffff0000, v29")
        a("v_cmp_gt_u32 vcc, 32, v1")
        a("v_add_f32_dpp v33, v32, v33 %s" % dpp(0))
        a("v_add_f32_dpp v35, v34, v35 %s" % dpp(2))
        a("s_nop 0")
        a("v_add_f32_dpp v32, v33, v35 %s" % dpp(1))
        a("v_fma_f32 v32, v32, %s, v11" % sC)
        a("s_nop 1")
        a("v_mov_b32_dpp v33, v32 row_newbcast:3 %s" % full)
        a("v_mov_b32_dpp v34, v32 row_newbcast:11 %s" % full)
        a("v_cndmask_b32 v20, v34, v33, vcc")
        a("L_nt:")
        a("v_lshlrev_b32 v6, 5, v10")
        a("ds_write_b32 v6, v20 offset:%d" % (LM + 16))
        a("s_mov_b32 %s, %d" % (sT1, tries - 1))
        a("s_waitcnt vmcnt(0) lgkmcnt(0)")
        a("s_barrier")
        a("global_load_dword v19, v18, %s sc1" % DBG)
        a("s_barrier")
        a("L_fl:")
        a("s_waitcnt vmcnt(0)")
        a("v_readfirstlane_b32 %s, v19" % sT0)
        a("s_nop 0")
        a("s_cmp_lg_u32 %s, 0" % sT0)
        a("s_cbranch_scc1 L_fl2")
        a("s_sub_u32 %s, %s, 1" % (sT1, sT1))
        a("s_cbranch_scc1 L_fl2")
        a("global_load_dword v19, v18, %s sc1" % DBG)
        a("s_branch L_fl")
        a("L_fl2:")
        a("s_cmp_eq_u32 %s, %s" % (sT0, sIN))
        a("s_cselect_b32 %s, %d, 0" % (sFL, 1 if fast else 0))
        if slowsel is not None:
            a("s_lshr_b32 %s, 0x%x, %s" % (sT0, slowsel, sSP))
            a("s_andn2_b32 %s, %s, %s" % (sFL, sFL, sT0))
        a("s_cmp_eq_u32 %s, 0" % sSP)
        a("s_cselect_b32 %s, 1, %s" % (sFL, sFL))
        st(3)
        a("v_mov_b32 v12, %s" % sFL)
        a("v_mov_b32 v13, 0")
        a("ds_write_b32 v13, v12 offset:%d" % LROLE)
        if cm:
            a("s_lshl_b32 %s, %s, 6" % (sT0, sSP)); a("s_or_b32 %s, %s, %s" % (sT0, sT0, sCO))
            a("v_lshrrev_b32 v8, 2, v1")
            vscat(9, 8, sm, sT0, 7)
            a("v_and_b32 v11, 48, v4"); a("v_or_b32 v11, v11, v9")
        else:
            sscat(sT0, sSP, sm, sCO)
            a("v_add_u32 v11, %s, v4" % sT0)
        a("s_lshl_b32 %s, %s, 4" % (sT0, sSP))
        a("s_add_u32 %s, %s, %s" % (sT0, sT0, sCO))
        a("v_lshl_add_u32 v21, v10, 3, %s" % sT0)
        a("s_cmp_eq_u32 %s, 0" % sFL)
        a("s_cbranch_scc1 L_nomk")
        if not dg & 4: a("global_store_dwordx4 v11, v[44:47], %s" % WS)
        if fill & 1: a("global_load_dwordx4 v[48:51], v11, %s sc1" % WS)
        if fill & 4:
            sscat(sT0, sSP, sm, sCO)
            a("v_add_u32 v11, %s, v4" % sT0)
            a("global_load_dwordx4 v[48:51], v11, %s sc1" % WS)
            a("s_cmp_eq_u32 %s, 0" % sFL)
        a("L_nomk:")
        a("ds_read_b128 v[12:15], v6 offset:%d" % LM)
        a("s_waitcnt lgkmcnt(0)")
        a("v_max3_f32 v16, v12, v13, v14")
        a("v_max3_f32 v16, v16, v15, v20")
        a("v_sub_f32 v20, v20, v16")
        a("v_exp_f32 v20, v20")
        a("s_nop 0")
        for i in range(4): a("v_mul_f32 v%d, v20, v%d" % (24 + i, 24 + i))
        a("ds_write_b128 v4, v[24:27] offset:%d" % (FIN * 1024))
        a("s_waitcnt lgkmcnt(0)")
        st(4)
        a("s_barrier")
        a("ds_read_b128 v[12:15], v6 offset:%d" % LL)
        a("s_waitcnt lgkmcnt(0)")
        a("v_add_f32 v12, v12, v13")
        a("v_add_f32 v14, v14, v15")
        a("v_add_f32 v12, v12, v14")
        a("v_add_f32 v17, v12, v20")
        a("s_waitcnt vmcnt(0)")
        a("s_cbranch_scc1 L_hs")
        a("global_store_dwordx2 v21, v[16:17], %s offset:%d" % (WS, HDR))
        st(5)
        a("s_branch L_he")
        a("L_hs:")
        a("global_store_dwordx2 v21, v[16:17], %s offset:%d sc1" % (WS, SLOW + HDR))
        a("s_waitcnt vmcnt(0)")
        a("L_he:")
        if ST:
            a("s_barrier"); a("s_branch L_diag")
        a("s_endpgm")
    for c in order: {"h": helper, "p": poller, "f": finisher}[c]()
    if ST:
        a("L_diag:")
        a("s_mov_b64 exec, -1")
        if ST == "st": st0.dump(sW, NW + 1, WS)
        else: st0.encode(int(ST), k=enc_k)
        a("s_endpgm")
    return wrap(a.text(), NWG, (NW + 1) * 64, LDS, nv, nsgpr=96 if ST else 64)

if __name__ == "__main__":
    kw = {}
    for x in sys.argv[1:]:
        k, v = x.split("=")
        try: v = eval(v)
        except: pass
        kw[k] = v
    if "ST" in kw and kw["ST"] != "st": kw["ST"] = str(kw["ST"])
    sys.stdout.write(gen(**kw))
```

```python
import sys
from common import *

def conv(p):
    t = list(p[2]) + list(p[3])
    return (p[0], p[1], (t[3], t[4]), (t[0], t[1], t[2], t[5], t[6]), p[4])
P1B = conv(((521,1024,1041,144),(0,1105,0,269),(1045,3609),(2308,1552,2372,256,4621),(2097,2)))
S1 = ((4638,5395,6687,1675),(0,1363,2581,4376),(3352,2374),(2,7950,5642,258,7437),(569,1303))
def gen(ST=False, pol="nt", fast=1, outpol="", stamps=None, enc_k=10, tries=4, slowsel=None, NP=5, treesp=1, RY=0x400000,
        sm=(15, 16, 17, 18), hm=(19, 20, 21, 22), pat=S1, order="hpf", na=3, nb=3, rel=7, A0=4, asym=2, D=8, fill=4096, dg=0, hmask=None, sflag=1, sq=1, fw=3, sp=3, cut=0):
    masked = 0; cm = 1; hprio = 0; flpol = "sc1"
    NW, G, NWG = 4, 32, 256
    FIN = NW - 1
    DV = [8] * 8 + [D] * 56
    a = Asm()
    st0 = Stamps(a, ST, base=64)
    def st(i):
        if stamps is None or i in stamps: st0(i)
    QS, KS, VS, KT = "s[4:5]", "s[6:7]", "s[8:9]", "s[10:11]"
    VT, MK, OUT, DBG, WS = "s[12:13]", "s[14:15]", "s[16:17]", "s[18:19]", "s[20:21]"
    sW, sH, sSP, sC, sIN, sFL, sT0, sT1, sCH = "s28", "s29", "s30", "s31", "s32", "s33", "s34", "s35", "s36"
    sDN, sRY, sCL, sCO = "s38", "s39", "s40", "s41"
    vKo, vVo = 2, 3
    vLin, vSt, vMw, vMr = 4, 5, 6, 7
    vA = 8
    vHa, vBa, vOa, vRo = 12, 13, 14, 15
    vH = 16
    vM = 20
    vT = 24
    vP = 32
    vR = 48
    vQ0, vQ1 = 104, 108
    NT = 8
    vD = 112
    nv = 240
    vX = vP
    dpp = lambda p: "quad_perm:[%d,%d,%d,%d] row_mask:0xf bank_mask:0xf" % (p, p, p, p)
    full = "row_mask:0xf bank_mask:0xf"
    LM = 4096
    LL = LM + 64
    LROLE = LL + 64
    LDS = LROLE + 16
    HDR = 1024
    SLOW = 2048
    assert min(sm + hm) >= 12
    def runs(m):
        out = []; i = 0
        while i < 4:
            j = i
            while j + 1 < 4 and m[j + 1] == m[j] + 1: j += 1
            out.append((i, j - i + 1, m[i])); i = j + 1
        return out
    def sscat(dst, src, m, base=None):
        first = True
        for (o, n, p) in runs(m):
            t = dst if first else "s42"
            if n == 4: a("s_lshl_b32 %s, %s, %d" % (t, src, p))
            else:
                a("s_bfe_u32 %s, %s, 0x%x" % (t, src, (n << 16) | o)); a("s_lshl_b32 %s, %s, %d" % (t, t, p))
            if not first: a("s_or_b32 %s, %s, s42" % (dst, dst))
            first = False
        if base: a("s_or_b32 %s, %s, %s" % (dst, dst, base))
    def hscat():
        if hmask is None: return sscat(sCO, sH, hm)
        a("s_mov_b32 %s, 0" % sCO)
        for k, m in enumerate(hmask):
            a("s_bitcmp1_b32 %s, %d" % (sH, k)); a("s_cselect_b32 s42, 0x%x, 0" % m); a("s_xor_b32 %s, %s, s42" % (sCO, sCO))
    def vscat(dst, src, m, base, tmp):
        cur = base
        for (o, n, p) in runs(m):
            if n == 4: a("v_lshl_or_b32 v%d, v%d, %d, %s" % (dst, src, p, cur))
            else:
                a("v_bfe_u32 v%d, v%d, %d, %d" % (tmp, src, o, n)); a("v_lshl_or_b32 v%d, v%d, %d, %s" % (dst, tmp, p, cur))
            cur = "v%d" % dst

    a("s_load_dwordx8 s[4:11], s[0:1], 0")
    st0.init()
    a("s_cmp_ge_u32 s2, %d" % NWG)
    a("s_cbranch_scc1 L_exit")
    rt = pat == "rt"
    if rt:
        a("s_load_dwordx16 s[44:59], s[0:1], 72")
        a("s_load_dwordx2 s[60:61], s[0:1], 136")
    a("v_lshrrev_b32 v4, 6, v0")
    a("v_and_b32 v2, 3, v0")
    a("v_bfe_u32 v5, v0, 4, 2")
    a("v_readfirstlane_b32 %s, v4" % sW)
    a("v_lshlrev_b32 v2, 4, v2")
    a("v_lshl_or_b32 v5, v5, 6, v2")
    a("v_bfe_i32 v6, v0, 2, 1")
    a("v_bfe_i32 v7, v0, 3, 1")
    if rt:
        a("s_waitcnt lgkmcnt(0)")
        a("s_add_u32 %s, s2, s59" % sT0); a("s_and_b32 %s, %s, 7" % (sT0, sT0))
    else:
        a("s_and_b32 %s, s2, 7" % sT0)
    a("s_lshr_b32 %s, s2, 3" % sT1)
    a("s_lshl_b32 %s, %s, 5" % (sT0, sT0))
    a("s_or_b32 %s, %s, %s" % (sCH, sT0, sT1))
    a("s_lshr_b32 %s, %s, 4" % (sH, sCH))
    if fill & 3072:
        a("s_cmp_lg_u32 %s, %d" % (sW, NW))
        a("s_cbranch_scc1 L_w")
        a("s_load_dwordx2 s[20:21], s[0:1], 64")
        a("s_lshl_b32 %s, %s, 15" % (sT0, sCH))
        if fill & 1024:
            a("v_and_b32 v1, 63, v0")
            a("v_lshl_add_u32 v53, v1, 4, %s" % sT0)
            a("s_waitcnt lgkmcnt(0)")
            a("global_load_dword v53, v53, %s sc1" % WS)
        else:
            a("s_waitcnt lgkmcnt(0)")
            for k in range(8): a("s_load_dwordx2 s[46:47], %s, %s offset:%d" % (WS, sT0, 128 * k + 60))
        a("s_barrier"); a("s_barrier"); a("s_barrier")
        a("s_branch L_helper")
        a("L_w:")
    if rt:
        a("s_lshr_b32 %s, s59, 8" % sT1); a("s_lshl_b32 s43, %s, %s" % (sH, sT1))
        col = lambda k: "s%d" % (44 + k)
    else:
        a("s_lshl_b32 s43, %s, 21" % sH)
        cols = [c << 8 for c in list(pat[0]) + list(pat[1]) + list(pat[2])]
        col = lambda k: "0x%x" % cols[k]
        a("s_mov_b32 s60, 0x%x" % (pat[4][0] << 8)); a("s_mov_b32 s61, 0x%x" % (pat[4][1] << 8))
        x = 0
        for k in range(5):
            x ^= pat[3][k]; a("s_mov_b32 s%d, 0x%x" % (54 + k, x << 8))
    a("v_and_b32 v6, s60, v6"); a("v_and_b32 v7, s61, v7")
    a("v_xor_b32 v2, v6, v7"); a("v_xor_b32 v2, v2, v5")
    for k in range(10):
        if not rt and cols[k] == 0: continue
        a("s_bitcmp1_b32 %s, %d" % ((sCH, k) if k < 8 else (sW, k - 8)))
        a("s_cselect_b32 %s, %s, 0" % (sT1, col(k)))
        a("s_xor_b32 s43, s43, %s" % sT1)
    fa = [vT + k for k in range(7)] + [vKo]
    a("v_xor_b32 v%d, s43, v2" % fa[0])
    for g in range(1, 8):
        a("v_xor_b32 v%d, s%d, v%d" % (fa[g], 54 + (g & -g).bit_length() - 1, fa[g - 1]))
    if fill & 16:
        a("s_load_dwordx2 s[20:21], s[0:1], 64")
        a("s_lshl_b32 %s, %s, 15" % (sT0, sCH))
        a("v_lshl_add_u32 v%d, v0, 4, %s" % (vR, sT0))
        a("s_cmp_lg_u32 %s, 0" % sW); a("s_cbranch_scc1 L_f0")
        a("s_waitcnt lgkmcnt(0)")
        a("global_load_dword v%d, v%d, %s sc1" % (vR, vR, WS))
        a("L_f0:")
    if sq:
        a("s_lshl2_add_u32 s63, %s, %s" % (sH, sW)); a("s_lshl_b32 s63, s63, 7")
        if sq == 2: a("s_waitcnt lgkmcnt(0)"); a("s_load_dword s62, %s, s63" % QS); a("s_load_dword s62, %s, s63 offset:64" % QS)
    for k in range(3):
        a("s_cmp_gt_u32 %s, %d" % (sW, k)); a("s_cbranch_scc0 L_go"); a("s_barrier")
    if not fill & 3072:
        a("s_cmp_eq_u32 %s, %d" % (sW, NW))
        a("s_cbranch_scc1 L_helper")
    a("L_go:")
    a("s_cmp_lt_u32 %s, 3" % sW)
    if sq != 2: a("s_waitcnt lgkmcnt(0)")
    if sq == 1: a("s_load_dword s62, %s, s63" % QS); a("s_load_dword s62, %s, s63 offset:64" % QS)
    st(1)
    class Stream:
        def __init__(s): s.cur = {vKo: 0, vVo: 0}; s.ops = []; s.done = -1
        def copy(s):
            t = Stream(); t.cur = dict(s.cur); t.ops = list(s.ops); t.done = s.done; return t
        def issue(s, i, sep=False):
            g = i % G
            vo, base = (vKo, KS) if i < G else (vVo, VS)
            if i < 8: vo = fa[i]
            elif g: a("v_xor_b32 v%d, s%d, v%d" % (vo, 54 + (g & -g).bit_length() - 1, vo))
            a("global_load_dwordx4 v[%d:%d], v%d, %s %s" % (vD + 4 * g, vD + 4 * g + 3, vo, base, pol))
            s.ops.append(i)
        def wait(s, x):
            if x > s.done:
                a("s_waitcnt vmcnt(%d)" % (len(s.ops) - 1 - s.ops.index(x))); s.done = x
                return True
            return False
        def slot(s, i):
            w = i - DV[i] >= 0 and s.wait(i - DV[i])
            s.issue(i, sep=(not w and 0 < i < D))
    S = Stream()
    def qloads():
        a("s_load_dwordx8 s[12:19], s[0:1], 32")
        a("s_load_dwordx2 s[20:21], s[0:1], 64")
        a("v_bfe_u32 v6, v0, 3, 1")
        a("v_lshl_or_b32 v7, v6, 8, v5")
        a("s_lshl_b32 %s, %s, 9" % (sT1, sH))
        a("v_or_b32 v7, %s, v7" % sT1)
        for i in range(4): a("v_mov_b64 v[%d:%d], 0" % (vQ0 + 2 * i, vQ0 + 2 * i + 1))
        a("s_mov_b32 exec_lo, 0x0f0f0f0f"); a("s_mov_b32 exec_hi, exec_lo")
        if not cut & 8: a("global_load_dwordx4 v[%d:%d], v7, %s" % (vQ0, vQ0 + 3, QS))
        a("s_not_b64 exec, exec")
        if not cut & 8: a("global_load_dwordx4 v[%d:%d], v7, %s" % (vQ1, vQ1 + 3, QS))
        a("s_mov_b64 exec, -1")
        if not cut & 8: S.ops.extend(["Q0", "Q1"])
    def consts():
        t = vT
        a("v_and_b32 v1, 63, v0")
        a("v_lshlrev_b32 v%d, 4, v1" % vLin)
        if True:
            a("v_bfe_i32 v%d, v0, 4, 1" % t); a("v_bfe_i32 v%d, v0, 5, 1" % (t + 1))
            a("v_and_b32 v%d, s60, v%d" % (t, t)); a("v_and_b32 v%d, s61, v%d" % (t + 1, t + 1))
            a("v_and_b32 v%d, 0xf0, v%d" % (vVo, vLin)); a("v_xor_b32 v%d, v%d, v%d" % (t, t, t + 1))
            a("v_xor_b32 v%d, s43, v%d" % (vVo, vVo)); a("v_xor_b32 v%d, v%d, v%d" % (vVo, vVo, t))
        a("v_lshlrev_b32 v%d, 5, v6" % vMr)
        a("s_lshl_b32 %s, %s, 2" % (sT0, sW))
        a("v_add_u32 v%d, %s, v%d" % (vMw, sT0, vMr))
        a("s_and_b32 %s, %s, 15" % (sSP, sCH))
        a("v_lshlrev_b32 v%d, 4, v0" % (vH + 3))
        hscat()
        a("s_and_b32 %s, %s, 8" % (sT0, sSP))
        a("s_add_u32 %s, %s, %s" % (sT0, sT0, sCO))
        a("v_lshrrev_b32 v%d, 2, v1" % vBa)
        a("v_lshl_add_u32 v%d, v%d, 4, %s" % (vH + 2, vBa, sT0))
        a("s_mov_b32 %s, 0x%08x" % (sC, f2u(C_QK)))
        a("v_and_b32 v%d, 1, v1" % t)
        a("v_lshlrev_b32 v%d, 4, v%d" % (t, t))
        a("v_mov_b32 v%d, 0xffff" % (t + 1))
        a("v_lshlrev_b32 v%d, v%d, v%d" % (t, t, t + 1))
        a("s_mov_b32 vcc_lo, 0x03030303"); a("s_mov_b32 vcc_hi, vcc_lo")
        for i in range(4):
            a("v_cndmask_b32 v%d, 0, v%d, vcc" % (vM + i, t))
            if i < 3: a("s_lshl_b64 vcc, vcc, 2")
        a("s_cmp_lt_u32 %s, %d" % (sW, asym))
        a("s_cselect_b64 vcc, -1, 0")
    tile = lambda p: vR + 4 * (p % NT)
    def qk(g):
        d = tile(g // 2)
        q = (vQ0, vQ1)[g & 1]
        a("v_mfma_f32_16x16x32_bf16 v[%d:%d], v[%d:%d], v[%d:%d], %s" % (d, d + 3, vD + 4 * g, vD + 4 * g + 3, q, q + 3,
            "0" if g % 2 == 0 else "v[%d:%d]" % (d, d + 3)))
    t0, t1, t2 = vT, vT + 1, vT + 2
    def red2(p):
        for x in (p, p + 1):
            b = tile(x)
            a("v_add_f32_dpp v%d, v%d, v%d %s" % (b + 1, b, b + 1, dpp(0)))
            a("v_add_f32_dpp v%d, v%d, v%d %s" % (b + 3, b + 2, b + 3, dpp(2)))
        for x in (p, p + 1):
            b = tile(x)
            a("v_add_f32_dpp v%d, v%d, v%d %s" % (vP + x, b + 1, b + 3, dpp(1)))
        if p == 0: a("v_max_f32 v%d, v%d, v%d" % (t0, vP, vP + 1))
        else: a("v_max3_f32 v%d, v%d, v%d, v%d" % (t0, t0, vP + p, vP + p + 1))
    P = G // 2
    def soft1():
        a("v_mov_b32 v%d, v%d" % (t1, t0))
        a("s_nop 1")
        a("v_permlane32_swap_b32 v%d, v%d" % (t0, t1))
        a("v_max_f32 v%d, v%d, v%d" % (t0, t0, t1))
        a("v_mov_b32 v%d, v%d" % (t1, t0))
        a("s_nop 1")
        a("v_permlane16_swap_b32 v%d, v%d" % (t0, t1))
        a("v_max_f32 v%d, v%d, v%d" % (t0, t0, t1))
        a("s_nop 1")
        a("v_mov_b32_dpp v%d, v%d %s" % (t1, t0, dpp(3)))
        a("s_nop 1")
        a("v_max_f32_dpp v%d, v%d, v%d row_half_mirror %s" % (t0, t1, t1, full))
        a("v_mul_f32 v%d, %s, v%d" % (t0, sC, t0))
        a("ds_write_b32 v%d, v%d offset:%d" % (vMw, t0, LM))
    def soft2():
        L = []
        e = L.append
        e("s_waitcnt lgkmcnt(0)")
        e("v_max3_f32 v%d, v%d, v%d, v%d" % (t0, vT + 4, vT + 5, vT + 6))
        e("v_max3_f32 v%d, v%d, v%d, v%d" % (t0, t0, vT + 7, vT + 3))
        for p in range(P): e("v_fma_f32 v%d, v%d, %s, -v%d" % (vP + p, vP + p, sC, t0))
        for p in range(P): e("v_exp_f32_dpp v%d, v%d %s" % (vP + p, vP + p, dpp(3)))
        e("v_add_f32 v%d, v%d, v%d" % (t1, vP, vP + 1))
        for p in range(2, P): e("v_add_f32 v%d, v%d, v%d" % (t1, t1, vP + p))
        cv = lambda p: e("v_cvt_pk_bf16_f32 v%d, v%d, v%d" % (vP + p, vP + p, vP + p))
        e("v_mov_b32 v%d, v%d" % (t2, t1))
        cv(0); cv(1)
        e("v_permlane32_swap_b32 v%d, v%d" % (t1, t2))
        e("v_add_f32 v%d, v%d, v%d" % (t1, t1, t2))
        e("v_mov_b32 v%d, v%d" % (t2, t1))
        cv(2); cv(3)
        e("v_permlane16_swap_b32 v%d, v%d" % (t1, t2))
        e("v_add_f32 v%d, v%d, v%d" % (t2, t1, t2))
        cv(4); cv(5)
        e("v_add_f32_dpp v%d, v%d, v%d row_half_mirror %s" % (t1, t2, t2, full))
        e("ds_write_b32 v%d, v%d offset:%d" % (vMw, t1, LL))
        for p in range(6, P): cv(p)
        return L
    def ands(g):
        src = vP + g // 2
        dst = vR + 4 * (g % 16)
        for i in range(4):
            if (i >> 1) == (g & 1): a("v_and_b32 v%d, v%d, v%d" % (dst + i, src, vM + i))
            else: a("v_and_b32_dpp v%d, v%d, v%d row_half_mirror %s" % (dst + i, src, vM + i, full))
    def pv(g, zero=False):
        s = vR + 4 * (g % 16)
        a("v_mfma_f32_16x16x32_bf16 v[%d:%d], v[%d:%d], v[%d:%d], %s" % (vA, vA + 3, s, s + 3, vD + 4 * g, vD + 4 * g + 3,
            "0" if zero else "v[%d:%d]" % (vA, vA + 3)))

    nb_ = [0]
    def burst(r, bar=False):
        if cut & 16: bar = False
        if bar:
            a("s_cbranch_vccnz L_ba%d" % r); a("s_barrier"); a("L_ba%d:" % r)
        for i in range(8 * r, 8 * r + 8): S.slot(i)
        if bar:
            a("s_cbranch_vccz L_bb%d" % r); a("s_barrier"); a("L_bb%d:" % r)
        if r: S.wait(8 * r - 1)
    for i in range(8):
        if i == rel:
            a("s_cbranch_scc0 L_r0"); a("s_barrier"); a("L_r0:")
        S.slot(i)
    for k in range(3):
        if k == 0 and rel < 8: continue
        if k: a("s_cmp_lt_u32 %s, %d" % (sW, 3 - k))
        a("s_cbranch_scc0 L_go2"); a("s_barrier")
    a("L_go2:")
    qloads(); consts(); st(2)
    burst(1)
    burst(2)
    for g in range(16): qk(g)
    red2(0); red2(2); red2(4); red2(6)
    burst(3, A0 == 3)
    for g in range(16, 24): qk(g)
    burst(4, A0 == 4)
    for g in range(24, 32): qk(g)
    st(3)
    red2(8); red2(10); red2(12); red2(14)
    soft1()
    a("s_waitcnt lgkmcnt(0)")
    burst(5, True)
    a("ds_read_b128 v[%d:%d], v%d offset:%d" % (vT + 4, vT + 7, vMr, LM))
    a("ds_read_b32 v%d, v%d offset:%d" % (vT + 3, vMr, LM + 16))
    for x in soft2(): a(x)
    for g in range(16): ands(g)
    for g in range(8): pv(g, g == 0)
    a("s_waitcnt lgkmcnt(0)")
    st(4)
    burst(6, True)
    a("v_mov_b32 v%d, 0" % vRo)
    a("ds_read_b32 v%d, v%d offset:%d" % (vRo, vRo, LROLE))
    for g in range(8, 16): pv(g)
    for g in range(16, 32): ands(g)
    a("s_waitcnt lgkmcnt(0)")
    a("v_readfirstlane_b32 %s, v%d" % (sFL, vRo))
    burst(7)
    st(12)
    if fill & 4096:
        a("s_cmp_lg_u32 %s, %d" % (sW, fw)); a("s_cbranch_scc1 L_lf")
        sscat(sT0, sSP, sm, sCO); a("v_add_u32 v%d, %s, v%d" % (vT + 1, sT0, vLin))
        a("global_load_dword v%d, v%d, %s sc1" % (vT + 1, vT + 1, WS))
        a("L_lf:")
    a("s_cmp_lg_u32 %s, 0" % sW)
    a("s_cbranch_scc1 L_nh")
    if not cut & 2: a("global_load_dwordx2 v[%d:%d], v%d, %s offset:%d sc1" % (vH, vH + 1, vH + 2, WS, HDR))
    a("L_nh:")
    a("s_cselect_b32 %s, 0, %s" % (sT0, sFL))
    for g in range(16, 24): pv(g)
    a("s_cmp_eq_u32 %s, %d" % (sW, FIN))
    a("s_cbranch_scc1 L_fin")
    F = S.copy()
    if fill & 4096 and fw == 3: F.ops.append("fill")
    a("s_cmp_lg_u32 %s, 0" % sT0)
    for g in range(24, 32):
        S.wait(g + G); pv(g)
    st(5)
    a("s_nop 7")
    a("ds_write_b128 v%d, v[%d:%d]" % (vH + 3, vA, vA + 3))
    if not cut & 2: a("s_cbranch_scc1 L_poll")
    a("s_waitcnt lgkmcnt(0)")
    a("s_barrier")
    a("L_end:")
    if ST: a("s_branch L_diag")
    a("L_exit:")
    a("s_endpgm")

    def poller():
        vB = vR
        t = vT
        a("L_poll:")
        a("v_and_b32 v%d, 3, v1" % (t + 3))
        vscat(vHa, vBa, sm, sCO, t)
        a("v_lshl_add_u32 v%d, v%d, 4, v%d" % (vBa, t + 3, vHa))
        a("v_lshrrev_b32 v%d, 4, v1" % t)
        a("v_lshl_add_u32 v%d, v%d, 3, v%d" % (t, t + 3, t))
        a("s_lshl_b32 %s, %s, 9" % (sT1, sH))
        a("v_lshl_add_u32 v%d, v%d, 1, %s" % (vOa, t, sT1))
        a("s_mov_b32 %s, 0" % sCL)
        a("s_cmp_eq_u32 %s, 0" % sSP)
        a("s_cselect_b32 %s, 0, -1" % sDN)
        a("s_mov_b32 %s, 0x%x" % (sRY, RY))
        a("s_waitcnt lgkmcnt(0)")
        a("L_col:")
        if cm:
            sscat(sT0, sSP, sm, sCO)
            a("v_add_u32 v%d, %s, v%d" % (vT + 2, sT0, vLin))
            a("s_lshl_b32 %s, %s, 6" % (sT0, sSP))
        else:
            a("s_lshl_b32 %s, %s, 6" % (sT0, sSP))
            a("v_add_u32 v%d, %s, v%d" % (vT + 2, sT0, vBa))
        a("s_and_b32 %s, %s, 0xc0" % (sT0, sT0))
        a("s_mul_i32 %s, %s, 34" % (sT1, sSP))
        a("s_and_b32 %s, %s, 0x108" % (sT1, sT1))
        a("s_or_b32 %s, %s, %s" % (sT0, sT0, sT1))
        a("v_add_u32 v%d, %s, v%d" % (vT + 3, sT0, vOa))
        a("v_mov_b32 v%d, -1" % vB)
        a("L_hc:")
        a("v_max_u32 v%d, v%d, v%d" % (vT + 4, vH, vH + 1))
        a("v_cmp_eq_u32 vcc, -1, v%d" % (vT + 4))
        a("s_cbranch_vccnz L_hr")
        a("L_hok:")
        st(8)
        for r in range(1, 4): a("v_mov_b32 v%d, -1" % (vB + r))
        def allred(op, x, src):
            y = x + 1
            a("%s_dpp v%d, v%d, v%d row_ror:8 %s" % (op, x, src, src, full))
            a("s_nop 1")
            a("%s_dpp v%d, v%d, v%d row_ror:4 %s" % (op, x, x, x, full))
            a("v_mov_b32 v%d, v%d" % (y, x))
            a("s_nop 1")
            a("v_permlane16_swap_b32 v%d, v%d" % (x, y))
            a("%s v%d, v%d, v%d" % (op, x, x, y))
            a("v_mov_b32 v%d, v%d" % (y, x))
            a("s_nop 1")
            a("v_permlane32_swap_b32 v%d, v%d" % (x, y))
            a("%s v%d, v%d, v%d" % (op, x, x, y))
        allred("v_max_f32", vT + 4, vH)
        a("v_sub_f32 v%d, v%d, v%d" % (vH, vH, vT + 4))
        a("v_exp_f32 v%d, v%d" % (vH, vH))
        a("s_nop 0")
        a("v_mul_f32 v%d, v%d, v%d" % (vH + 1, vH, vH + 1))
        a("s_nop 1")
        allred("v_add_f32", vT + 4, vH + 1)
        a("v_rcp_f32 v%d, v%d" % (vT + 4, vT + 4))
        a("s_nop 0")
        a("v_mul_f32 v%d, v%d, v%d" % (vH, vH, vT + 4))
        a("s_cmp_eq_u32 %s, 0" % sFL)
        a("s_cbranch_scc1 L_bp")
        a("s_mov_b32 %s, 0" % sFL)
        a("s_barrier")
        st(9)
        a("L_bp:")
        a("global_load_dwordx4 v[%d:%d], v%d, %s sc1" % (vB, vB + 3, vT + 2, WS))
        a("s_sub_u32 %s, %s, 1" % (sRY, sRY))
        a("s_cbranch_scc1 L_bok")
        a("s_waitcnt vmcnt(%d)" % (NP - 1))
        a("v_max3_u32 v%d, v%d, v%d, v%d" % (vT + 4, vB, vB + 1, vB + 2))
        a("v_max_u32 v%d, v%d, v%d" % (vT + 4, vT + 4, vB + 3))
        a("v_cmp_eq_u32 vcc, -1, v%d" % (vT + 4))
        if masked:
            a("s_and_b64 exec, exec, vcc")
            a("s_cbranch_scc1 L_bp")
            a("L_bok:")
            a("s_mov_b64 exec, -1")
        else:
            a("s_cbranch_vccnz L_bp")
            a("L_bok:")
        st(10)
        for r in (0, 2, 1, 3):
            a("v_mul_f32 v%d, v%d, v%d" % (vA + r, vH, vB + r))
        a("s_cmp_eq_u32 %s, 0" % sCL)
        a("v_permlane32_swap_b32 v%d, v%d" % (vA, vA + 2))
        a("v_permlane32_swap_b32 v%d, v%d" % (vA + 1, vA + 3))
        a("v_add_f32 v%d, v%d, v%d" % (vA, vA, vA + 2))
        a("v_add_f32 v%d, v%d, v%d" % (vA + 1, vA + 1, vA + 3))
        a("s_nop 1")
        a("v_permlane16_swap_b32 v%d, v%d" % (vA, vA + 1))
        a("v_add_f32 v%d, v%d, v%d" % (vA, vA, vA + 1))
        a("s_nop 1")
        a("v_add_f32_dpp v%d, v%d, v%d row_ror:8 %s" % (vA, vA, vA, full))
        a("s_nop 1")
        a("v_add_f32_dpp v%d, v%d, v%d row_ror:4 %s" % (vA, vA, vA, full))
        a("v_cvt_pk_bf16_f32 v%d, v%d, v%d" % (vA, vA, vA))
        st(11)
        a("global_store_short v%d, v%d, %s %s" % (vT + 3, vA, OUT, outpol))
        a("s_cbranch_scc0 L_more")
        if ST: a("s_branch L_diag")
        a("s_endpgm")
        a("L_more:")
        a("s_max_i32 %s, %s, 64" % (sRY, sRY))
        a("s_ff1_i32_b32 %s, %s" % (sSP, sCL))
        a("s_bitset0_b32 %s, %s" % (sCL, sSP))
        a("s_and_b32 %s, %s, 8" % (sT0, sSP))
        a("v_and_b32 v%d, -9, v%d" % (vH + 2, vH + 2))
        a("v_or_b32 v%d, %s, v%d" % (vH + 2, sT0, vH + 2))
        a("global_load_dwordx2 v[%d:%d], v%d, %s offset:%d sc1" % (vH, vH + 1, vH + 2, WS, HDR))
        a("s_waitcnt vmcnt(0)")
        a("s_branch L_col")
        a("L_hr:")
        a("s_cmp_eq_u32 %s, 0" % sFL)
        a("s_cbranch_scc1 L_hr2")
        a("s_mov_b32 %s, 0" % sFL)
        a("s_barrier")
        a("L_hr2:")
        a("s_sub_u32 %s, %s, 1" % (sRY, sRY))
        a("s_cbranch_scc1 L_hto")
        a("s_cmp_eq_u32 %s, -1" % sDN)
        a("s_cbranch_scc1 L_hl")
        a("s_lshl_b32 %s, %s, 4" % (sT0, sH))
        a("v_mov_b32 v%d, %s" % (vT + 4, sT0))
        a("global_load_dword v%d, v%d, %s offset:4 sc1" % (vT + 4, vT + 4, DBG))
        a("s_waitcnt vmcnt(0)")
        a("v_readfirstlane_b32 %s, v%d" % (sT0, vT + 4))
        a("s_nop 0")
        a("s_andn2_b32 %s, %s, %s" % (sT0, sT0, sDN))
        a("s_cbranch_scc0 L_hl")
        a("s_ff1_i32_b32 %s, %s" % (sT0, sT0))
        a("s_bitset1_b32 %s, %s" % (sDN, sT0))
        a("s_bitset1_b32 %s, %s" % (sCL, sT0))
        if cm:
            a("s_lshl_b32 %s, %s, 6" % (sT1, sT0))
            a("v_add_u32 v%d, %s, v%d" % (vT + 4, sT1, vBa))
        else:
            sscat(sT1, sT0, sm, sCO)
            a("v_add_u32 v%d, %s, v%d" % (vT + 4, sT1, vLin))
        a("s_lshl_b32 %s, %s, 4" % (sT0, sT0))
        a("s_add_u32 %s, %s, %s" % (sT0, sT0, sCO))
        a("v_mov_b32 v%d, %s" % (vT + 5, sT0))
        a("global_load_dwordx4 v[%d:%d], v%d, %s offset:%d sc1" % (vB + 4, vB + 7, vT + 4, WS, SLOW))
        a("global_load_dwordx4 v[%d:%d], v%d, %s offset:%d sc1" % (vB + 8, vB + 11, vT + 5, WS, SLOW + HDR))
        a("s_waitcnt vmcnt(0)")
        a("global_store_dwordx4 v%d, v[%d:%d], %s" % (vT + 4, vB + 4, vB + 7, WS))
        a("s_waitcnt vmcnt(0)")
        a("global_store_dwordx4 v%d, v[%d:%d], %s offset:%d" % (vT + 5, vB + 8, vB + 11, WS, HDR))
        a("L_hl:")
        a("global_load_dwordx2 v[%d:%d], v%d, %s offset:%d sc1" % (vH, vH + 1, vH + 2, WS, HDR))
        a("s_waitcnt vmcnt(0)")
        a("s_branch L_hc")
        a("L_hto:")
        a("s_mov_b32 %s, 64" % sRY)
        a("s_branch L_hok")

    def finisher():
        q = lambda w: vX + 4 * w
        def padd(d, x, y):
            a("v_pk_add_f32 v[%d:%d], v[%d:%d], v[%d:%d]" % (d, d + 1, x, x + 1, y, y + 1))
            a("v_pk_add_f32 v[%d:%d], v[%d:%d], v[%d:%d]" % (d + 2, d + 3, x + 2, x + 3, y + 2, y + 3))
        a("L_fin:")
        a("ds_read_b128 v[%d:%d], v%d" % (q(3), q(3) + 3, vH + 3))
        if cm:
            a("s_lshl_b32 %s, %s, 6" % (sT0, sSP)); a("s_or_b32 %s, %s, %s" % (sT0, sT0, sCO))
            vscat(vHa, vBa, sm, sT0, vT)
            a("v_and_b32 v%d, 48, v%d" % (vSt, vLin)); a("v_or_b32 v%d, v%d, v%d" % (vSt, vSt, vHa))
        else:
            sscat(sT0, sSP, sm, sCO)
            a("v_add_u32 v%d, %s, v%d" % (vSt, sT0, vLin))
        a("s_cmp_eq_u32 %s, 0" % sFL)
        k = 24
        for _ in range(na):
            F.wait(G + k); pv(k); k += 1
        a("s_barrier")
        st(6)
        for w in range(3):
            a("ds_read_b128 v[%d:%d], v%d offset:%d" % (q(w), q(w) + 3, vLin, w * 1024))
        for _ in range(nb):
            if k < G: F.wait(G + k); pv(k); k += 1
        a("s_waitcnt lgkmcnt(1)"); padd(q(0), q(0), q(1))
        a("s_waitcnt lgkmcnt(0)"); padd(q(2), q(2), q(3))
        last = k == G
        if k < G - 1: F.wait(G + k); pv(k); k += 1
        padd(q(0), q(0), q(2))
        while k < G:
            F.wait(G + k); pv(k); k += 1
        st(5)
        if not last: a("s_nop 7")
        padd(vA, vA, q(0))
        a("s_cbranch_scc1 L_bs")
        if not cut & 4: a("global_store_dwordx4 v%d, v[%d:%d], %s" % (vSt, vA, vA + 3, WS))
        st(7)
        if ST: a("s_branch L_diag")
        a("s_endpgm")
        a("L_bs:")
        a("s_lshl_b32 %s, 1, %s" % (sT0, sSP))
        a("s_lshl_b32 %s, %s, 4" % (sT1, sH))
        a("v_mov_b32 v2, %s" % sT0)
        a("v_mov_b32 v3, %s" % sT1)
        a("s_nop 3")
        a("global_store_dwordx4 v%d, v[%d:%d], %s offset:%d sc1" % (vSt, vA, vA + 3, WS, SLOW))
        a("s_waitcnt vmcnt(0)")
        a("s_mov_b64 exec, 1")
        a("global_atomic_or v3, v2, %s offset:4 sc1" % DBG)
        if ST: a("s_branch L_diag")
        a("s_endpgm")

    def helper():
        def sfill():
            sscat(sT0, sSP, sm, sCO)
            a("s_add_u32 s46, s20, %s" % sT0); a("s_addc_u32 s47, s21, 0")
            for k in range(16):
                if k == 12: a("s_waitcnt lgkmcnt(8)")
                a("s_load_dword s%d, s[46:47], %d" % (48 + k % 8 + (0 if k < 8 else 0), 64 * k))
        def rowfill():
            d2 = 0x202280 if hmask else 0x80
            a("v_bfe_i32 v8, v1, 0, 1"); a("v_and_b32 v8, 0x10200, v8")
            a("v_bfe_i32 v9, v1, 1, 1"); a("v_and_b32 v9, 0x8180, v9"); a("v_xor_b32 v8, v8, v9")
            a("v_bfe_i32 v9, v1, 2, 1"); a("v_and_b32 v9, 0x%x, v9" % d2); a("v_xor_b32 v8, v8, v9")
            a("s_and_b32 %s, %s, 3" % (sT0, sSP)); a("s_lshl_b32 %s, %s, 8" % (sT0, sT0))
            a("s_lshr_b32 s42, %s, 2" % sSP); a("s_lshl_b32 s42, s42, 17"); a("s_or_b32 %s, %s, s42" % (sT0, sT0))
            a("s_or_b32 %s, %s, %s" % (sT0, sT0, sCO))
            a("v_xor_b32 v8, %s, v8" % sT0)
            a("global_load_dword v53, v8, %s sc1" % WS)
        a("L_helper:")
        if cut & 1:
            a("v_mov_b32 v12, 1"); a("v_mov_b32 v13, 0"); a("ds_write_b32 v13, v12 offset:%d" % LROLE); a("s_waitcnt lgkmcnt(0)"); a("s_endpgm")
        if hprio: a("s_setprio %d" % hprio)
        a("s_load_dwordx8 s[12:19], s[0:1], 32")
        a("s_load_dwordx2 s[20:21], s[0:1], 64")
        a("v_and_b32 v1, 63, v0")
        a("s_and_b32 %s, %s, 15" % (sSP, sCH))
        a("v_lshlrev_b32 v4, 4, v1")
        a("v_lshrrev_b32 v10, 5, v1")
        a("s_getreg_b32 %s, hwreg(HW_REG_XCC_ID, 0, 4)" % sIN)
        a("s_add_u32 %s, %s, 1" % (sIN, sIN))
        a("s_lshl_b32 %s, %s, 4" % (sT0, sH))
        a("v_mov_b32 v18, %s" % sT0)
        for i in range(2): a("v_mov_b64 v[%d:%d], -1" % (44 + 2 * i, 45 + 2 * i))
        for i in range(2): a("v_mov_b64 v[%d:%d], 0" % (24 + 2 * i, 25 + 2 * i))
        a("v_mov_b32 v20, 0xff7fffff")
        a("v_mov_b32 v19, %s" % sIN)
        hscat()
        a("s_lshl_b32 %s, %s, 8" % (sT1, sH))
        a("s_cmp_lg_u32 %s, 0" % sSP)
        a("s_waitcnt lgkmcnt(0)")
        st(1)
        if fill & 8:
            sscat(sT0, sSP, sm, sCO)
            a("v_add_u32 v11, %s, v4" % sT0)
            a("global_load_dword v53, v11, %s sc1" % WS)
            a("s_cmp_lg_u32 %s, 0" % sSP)
        a("s_cbranch_scc1 L_np")
        a("v_lshl_add_u32 v11, v1, 2, %s" % sCO)
        a("global_store_dword v11, v44, %s offset:%d" % (WS, HDR))
        a("s_waitcnt vmcnt(0)")
        a("s_mov_b64 exec, 1")
        if not dg & 1: a("global_store_dword v18, v19, %s %s" % (DBG, flpol))
        a("s_mov_b64 exec, -1")
        if sp & 1:
            for k in range(4): a("s_load_dword s48, %s, %s offset:%d" % (WS, sCO, HDR + 64 * k))
        else: a("global_load_dword v52, v11, %s offset:%d sc1" % (WS, HDR))
        a("L_np:")
        if fill & 64: rowfill()
        if fill & 256: sfill()
        st(2)
        a("s_cmp_lg_u32 %s, %d" % (sSP, treesp))
        a("s_cbranch_scc1 L_nt")
        if sp & 2:
            for k in range(4): a("s_load_dword s48, %s, %s offset:%d" % (KT, sT1, 64 * k))
            for k in range(4): a("s_load_dword s48, %s, %s offset:%d" % (VT, sT1, 64 * k))
            a("s_load_dword s48, %s, 0" % MK)
            a("s_waitcnt lgkmcnt(0)")
        a("global_load_ushort v30, v24, %s" % MK)
        a("v_or_b32 v11, %s, v5" % sT1)
        a("global_load_dwordx4 v[36:39], v11, %s" % KT)
        a("v_bfe_u32 v12, v1, 3, 1")
        a("v_lshl_add_u32 v11, v12, 8, v11")
        a("v_add_u32 v11, %s, v11" % sT1)
        a("global_load_dwordx4 v[40:43], v11, %s" % QS)
        a("v_and_b32 v11, 15, v1")
        a("v_bfe_u32 v12, v1, 4, 1")
        a("v_lshl_add_u32 v11, v11, 1, v12")
        a("v_lshl_add_u32 v11, v11, 3, %s" % sT1)
        a("global_load_dwordx2 v[28:29], v11, %s" % VT)
        a("s_mov_b32 %s, 0x%08x" % (sC, f2u(C_QK)))
        a("s_waitcnt vmcnt(0)")
        a("v_mfma_f32_16x16x32_bf16 v[32:35], v[36:39], v[40:43], 0")
        a("v_lshlrev_b32 v30, 16, v30")
        a("v_sub_f32 v11, 1.0, v30")
        a("v_mul_f32 v11, 0x%08x, v11" % f2u(C_MASK))
        a("v_lshlrev_b32 v24, 16, v28")
        a("v_and_b32 v25, 0xffff0000, v28")
        a("v_lshlrev_b32 v26, 16, v29")
        a("v_and_b32 v27, 0xffff0000, v29")
        a("v_cmp_gt_u32 vcc, 32, v1")
        a("v_add_f32_dpp v33, v32, v33 %s" % dpp(0))
        a("v_add_f32_dpp v35, v34, v35 %s" % dpp(2))
        a("s_nop 0")
        a("v_add_f32_dpp v32, v33, v35 %s" % dpp(1))
        a("v_fma_f32 v32, v32, %s, v11" % sC)
        a("s_nop 1")
        a("v_mov_b32_dpp v33, v32 row_newbcast:3 %s" % full)
        a("v_mov_b32_dpp v34, v32 row_newbcast:11 %s" % full)
        a("v_cndmask_b32 v20, v34, v33, vcc")
        a("L_nt:")
        a("v_lshlrev_b32 v6, 5, v10")
        a("ds_write_b32 v6, v20 offset:%d" % (LM + 16))
        a("s_mov_b32 %s, %d" % (sT1, tries - 1))
        a("s_waitcnt vmcnt(0) lgkmcnt(0)")
        a("s_barrier")
        if fill & 128: rowfill()
        if fill & 512: sfill()
        if sflag:
            a("s_lshl_b32 s44, %s, 4" % sH); a("s_load_dword s45, %s, s44" % DBG)
        else: a("global_load_dword v19, v18, %s sc1" % DBG)
        a("s_barrier")
        a("L_fl:")
        if sflag:
            a("s_waitcnt lgkmcnt(0)"); a("s_mov_b32 %s, s45" % sT0)
        else:
            a("s_waitcnt vmcnt(0)")
            a("v_readfirstlane_b32 %s, v19" % sT0)
            a("s_nop 0")
        a("s_cmp_lg_u32 %s, 0" % sT0)
        a("s_cbranch_scc1 L_fl2")
        a("s_sub_u32 %s, %s, 1" % (sT1, sT1))
        a("s_cbranch_scc1 L_fl2")
        if sflag: a("s_load_dword s45, %s, s44 glc" % DBG)
        else: a("global_load_dword v19, v18, %s sc1" % DBG)
        a("s_branch L_fl")
        a("L_fl2:")
        a("s_cmp_eq_u32 %s, %s" % (sT0, sIN))
        a("s_cselect_b32 %s, %d, 0" % (sFL, 1 if fast else 0))
        if slowsel is not None:
            a("s_lshr_b32 %s, 0x%x, %s" % (sT0, slowsel, sSP))
            a("s_andn2_b32 %s, %s, %s" % (sFL, sFL, sT0))
        a("s_cmp_eq_u32 %s, 0" % sSP)
        a("s_cselect_b32 %s, 1, %s" % (sFL, sFL))
        st(3)
        a("v_mov_b32 v12, %s" % sFL)
        a("v_mov_b32 v13, 0")
        a("ds_write_b32 v13, v12 offset:%d" % LROLE)
        if cm:
            a("s_lshl_b32 %s, %s, 6" % (sT0, sSP)); a("s_or_b32 %s, %s, %s" % (sT0, sT0, sCO))
            a("v_lshrrev_b32 v8, 2, v1")
            vscat(9, 8, sm, sT0, 7)
            a("v_and_b32 v11, 48, v4"); a("v_or_b32 v11, v11, v9")
        else:
            sscat(sT0, sSP, sm, sCO)
            a("v_add_u32 v11, %s, v4" % sT0)
        a("s_lshl_b32 %s, %s, 4" % (sT0, sSP))
        a("s_add_u32 %s, %s, %s" % (sT0, sT0, sCO))
        a("v_lshl_add_u32 v21, v10, 3, %s" % sT0)
        a("s_cmp_eq_u32 %s, 0" % sFL)
        a("s_cbranch_scc1 L_nomk")
        if not dg & 4: a("global_store_dwordx4 v11, v[44:47], %s" % WS)
        if fill & 1: a("global_load_dwordx4 v[48:51], v11, %s sc1" % WS)
        if fill & 4:
            sscat(sT0, sSP, sm, sCO)
            a("v_add_u32 v11, %s, v4" % sT0)
            a("global_load_dwordx4 v[48:51], v11, %s sc1" % WS)
            a("s_cmp_eq_u32 %s, 0" % sFL)
        a("L_nomk:")
        a("ds_read_b128 v[12:15], v6 offset:%d" % LM)
        a("s_waitcnt lgkmcnt(0)")
        a("v_max3_f32 v16, v12, v13, v14")
        a("v_max3_f32 v16, v16, v15, v20")
        a("v_sub_f32 v20, v20, v16")
        a("v_exp_f32 v20, v20")
        a("s_nop 0")
        for i in range(4): a("v_mul_f32 v%d, v20, v%d" % (24 + i, 24 + i))
        a("ds_write_b128 v4, v[24:27] offset:%d" % (FIN * 1024))
        a("s_waitcnt lgkmcnt(0)")
        st(4)
        a("s_barrier")
        a("ds_read_b128 v[12:15], v6 offset:%d" % LL)
        a("s_waitcnt lgkmcnt(0)")
        a("v_add_f32 v12, v12, v13")
        a("v_add_f32 v14, v14, v15")
        a("v_add_f32 v12, v12, v14")
        a("v_add_f32 v17, v12, v20")
        a("s_waitcnt vmcnt(0)")
        a("s_cbranch_scc1 L_hs")
        a("global_store_dwordx2 v21, v[16:17], %s offset:%d" % (WS, HDR))
        st(5)
        a("s_branch L_he")
        a("L_hs:")
        a("global_store_dwordx2 v21, v[16:17], %s offset:%d sc1" % (WS, SLOW + HDR))
        a("s_waitcnt vmcnt(0)")
        a("L_he:")
        if ST:
            a("s_barrier"); a("s_branch L_diag")
        a("s_endpgm")
    for c in order: {"h": helper, "p": poller, "f": finisher}[c]()
    if ST:
        a("L_diag:")
        a("s_mov_b64 exec, -1")
        if ST == "st": st0.dump(sW, NW + 1, WS)
        else: st0.encode(int(ST), k=enc_k)
        a("s_endpgm")
    return wrap(a.text(), NWG, (NW + 1) * 64, LDS, nv, nsgpr=96 if ST else 64)

if __name__ == "__main__":
    kw = {}
    for x in sys.argv[1:]:
        k, v = x.split("=")
        try: v = eval(v)
        except: pass
        kw[k] = v
    if "ST" in kw and kw["ST"] != "st": kw["ST"] = str(kw["ST"])
    sys.stdout.write(gen(**kw))
```

```python
import math, struct
KNAME = "standalone__tree_speculative_verify_tree_attention_over_candidate_token_tree__decode"
HEADER = open("cdna_kernels/%s.s.ref" % KNAME).read().split("; Override launch")[0]

def f2u(x):
    return struct.unpack("<I", struct.pack("<f", x))[0]

SCALE = 128 ** -0.5
LOG2E = math.log2(math.e)
C_QK = SCALE * LOG2E
C_MASK = -1.0e9 * LOG2E

class Asm:
    def __init__(self):
        self.lines = []
    def __call__(self, s=""):
        for l in s.split("\n"):
            self.lines.append("    " + l.strip() if not l.strip().endswith(":") else l.strip())
    def text(self):
        return "\n".join(self.lines) + "\n"

def wrap(body, grid, block, lds, nvgpr, nsgpr=96, accum=None, kname=KNAME + "_kernel", extra_desc=""):
    if accum is None:
        accum = (nvgpr + 3) // 4 * 4
    s = HEADER
    s += "; @launch grid=(%d,1,1) block=(%d,1,1) lds=%d\n" % (grid, block, lds)
    s += '.amdgcn_target "amdgcn-amd-amdhsa--gfx950"\n.text\n'
    s += ".globl %s\n.p2align 8\n.type %s,@function\n%s:\n" % (kname, kname, kname)
    s += body
    s += '.section .rodata,"a"\n.p2align 6\n.amdhsa_kernel %s\n' % kname
    s += "  .amdhsa_next_free_vgpr %d\n  .amdhsa_next_free_sgpr %d\n  .amdhsa_accum_offset %d\n" % (nvgpr, nsgpr, accum)
    s += "  .amdhsa_group_segment_fixed_size 0\n  .amdhsa_kernarg_size 72\n  .amdhsa_user_sgpr_count 2\n"
    s += "  .amdhsa_user_sgpr_kernarg_segment_ptr 1\n  .amdhsa_system_sgpr_workgroup_id_x 1\n"
    s += extra_desc
    s += ".end_amdhsa_kernel\n"
    return s


class Stamps:
    def __init__(self, a, on, base=48, n=14):
        self.a, self.on, self.base, self.n = a, on, base, n
    def init(self, only=None):
        if not self.on: return
        self.only = only
        self.a("s_memrealtime s[%d:%d]" % (self.base, self.base + 1))
        for i in range(1, self.n):
            if only is not None and i not in only: continue
            self.a("s_mov_b64 s[%d:%d], 0" % (self.base + 2 * i, self.base + 2 * i + 1))
    def __call__(self, i):
        if not self.on: return
        self.a("s_memrealtime s[%d:%d]" % (self.base + 2 * i, self.base + 2 * i + 1))
    def dump(self, wave_sgpr, nw, ws, off=0x8000000):
        if not self.on: return
        a = self.a
        a("s_waitcnt vmcnt(0)")
        self(self.n - 1)
        a("L_dwait:")
        a("s_sleep 16")
        a("s_memrealtime s[46:47]")
        a("s_waitcnt lgkmcnt(0)")
        a("s_sub_u32 s45, s46, s%d" % self.base)
        a("s_cmp_lt_u32 s45, 1400")
        a("s_cbranch_scc1 L_dwait")
        a("s_mul_i32 s44, s2, %d" % nw)
        a("s_add_u32 s44, s44, %s" % wave_sgpr)
        a("s_lshl_b32 s44, s44, 7")
        a("s_add_u32 s44, s44, 0x%x" % off)
        a("s_mov_b64 exec, 1")
        a("v_mov_b32 v1, s44")
        a("s_getreg_b32 s45, hwreg(HW_REG_XCC_ID)")
        a("s_getreg_b32 s46, hwreg(HW_REG_HW_ID)")
        a("s_waitcnt lgkmcnt(0)")
        for i in range(self.n):
            if getattr(self, "only", None) is not None and i not in list(self.only) + [0, self.n - 1]:
                a("s_mov_b64 s[%d:%d], 0" % (self.base + 2 * i, self.base + 2 * i + 1))
            a("v_mov_b32 v2, s%d" % (self.base + 2 * i))
            a("v_mov_b32 v3, s%d" % (self.base + 2 * i + 1))
            a("global_store_dwordx2 v1, v[2:3], %s offset:%d" % (ws, 8 * i))
        a("v_mov_b32 v2, s45")
        a("v_mov_b32 v3, s46")
        a("global_store_dwordx2 v1, v[2:3], %s offset:%d" % (ws, 8 * 15))

    def encode(self, idx, X=4000, k=1):
        a = self.a
        b = self.base
        a("s_waitcnt vmcnt(0)")
        self(self.n - 1)
        a("s_waitcnt lgkmcnt(0)")
        a("s_sub_u32 s44, s%d, s%d" % (b + 2 * idx, b))
        a("s_cmp_eq_u32 s%d, 0" % (b + 2 * idx))
        a("s_cselect_b32 s44, 0, s44")
        a("s_mul_i32 s44, s44, %d" % k)
        a("s_add_u32 s44, s44, %d" % X)
        a("L_spin:")
        a("s_memrealtime s[46:47]")
        a("s_waitcnt lgkmcnt(0)")
        a("s_sub_u32 s45, s46, s%d" % b)
        a("s_cmp_lt_u32 s45, s44")
        a("s_cbranch_scc1 L_spin")
```

```python
import sys
from common import *

S1 = ((4638,5395,6687,1675),(0,1363,2581,4376),(3352,2374),(2,7950,5642,258,7437),(569,1303))

DOC = """; ---------------------------------------------------------------------------------------------------------
;
; that under round-robin placement a head stays on one die (speed only).  Waves 0..3 stream K then V (32 + 32
; loads of 4 keys each, bursts of 8, 32 KiB in flight per CU); wave 4 runs the hand-off protocol and the tree token.
;
;
; Hand-off (d_ws): every workgroup publishes a header {max, sum} and 256 f32 partial outputs; wave 0 of workgroup
;    plain stores; readers bypass L1.
; ---------------------------------------------------------------------------------------------------------
"""

def gen(ST=False, stamps=None, enc_k=10, pat=S1, NP=4, RY=0x400000, tries=4, fast=1, slowsel=None):
    NW, G, NWG, FIN = 4, 32, 256, 3
    lines = []
    class A:
        def __call__(s, t, c=None):
            t = t.strip()
            l = t if t.endswith(":") else "    " + t
            if c: l = "%-76s ; %s" % (l, c)
            lines.append(l)
    a = A()
    def note(t): lines.append("    ; ---- " + t)
    st0 = Stamps(a, ST, base=64)
    def st(i):
        if stamps is None or i in stamps: st0(i)
    QS, KS, VS, KT = "s[4:5]", "s[6:7]", "s[8:9]", "s[10:11]"
    VT, MK, OUT, DBG, WS = "s[12:13]", "s[14:15]", "s[16:17]", "s[18:19]", "s[20:21]"
    sW, sH, sSP, sC, sIN, sFL, sT0, sT1, sCH = "s28", "s29", "s30", "s31", "s32", "s33", "s34", "s35", "s36"
    sBASE, sDN, sRY, sCL, sCO, sJ0, sJ1, sPF, sQO, sFO, sFV = "s37", "s38", "s39", "s40", "s41", "s42", "s43", "s44", "s45", "s46", "s47"
    sD = 22
    vKo, vVo, vLin, vSt, vMw, vMr = 2, 3, 4, 5, 6, 7
    vA = 8
    vSl, vOa, vRo = 13, 14, 15
    vH, vHa, vDep = 16, 18, 19
    vM = 20
    vT = 24
    vP = 32
    vR = 48
    vQ0, vQ1 = 104, 108
    vD = 112
    nv = 240
    dpp = lambda p: "quad_perm:[%d,%d,%d,%d] row_mask:0xf bank_mask:0xf" % (p, p, p, p)
    full = "row_mask:0xf bank_mask:0xf"
    LM, LL, LROLE, LDS = 4096, 4160, 4224, 4240
    HDR, SLOW = 1024, 2048
    step = lambda g: "s%d" % (sD + (g & -g).bit_length() - 1)

    a("s_load_dwordx8 s[4:11], s[0:1], 0", "q, k_cache, v_cache, k_tree")
    st0.init(stamps)
    a("s_cmp_ge_u32 s2, %d" % NWG)
    a("s_cbranch_scc1 L_exit", "workgroups past the data")
    a("v_lshrrev_b32 v4, 6, v0")
    a("v_and_b32 v2, 3, v0")
    a("v_bfe_u32 v5, v0, 4, 2")
    a("v_readfirstlane_b32 %s, v4" % sW, "wave")
    a("v_lshlrev_b32 v2, 4, v2")
    a("v_lshl_or_b32 v5, v5, 6, v2", "(l>>4)*64 + (l&3)*16: byte within a K / q row")
    a("v_bfe_i32 v6, v0, 2, 1")
    a("v_bfe_i32 v7, v0, 3, 1")
    a("s_and_b32 %s, s2, 7" % sT0)
    a("s_lshr_b32 %s, s2, 3" % sT1)
    a("s_lshl_b32 %s, %s, 5" % (sT0, sT0))
    a("s_or_b32 %s, %s, %s" % (sCH, sT0, sT1), "head*16 + split")
    a("s_lshr_b32 %s, %s, 4" % (sH, sCH), "kv head")
    a("s_lshl_b32 %s, %s, 21" % (sBASE, sH))
    a("s_mov_b32 %s, 0x%x" % (sJ0, pat[4][0] << 8)); a("s_mov_b32 %s, 0x%x" % (sJ1, pat[4][1] << 8))
    x = 0
    for k in range(5):
        x ^= pat[3][k]; a("s_mov_b32 s%d, 0x%x" % (sD + k, x << 8))
    a("v_and_b32 v6, %s, v6" % sJ0); a("v_and_b32 v7, %s, v7" % sJ1)
    a("v_xor_b32 v2, v6, v7"); a("v_xor_b32 v2, v2, v5")
    for k, c in enumerate(list(pat[0]) + list(pat[1]) + list(pat[2])):
        if c == 0: continue
        a("s_bitcmp1_b32 %s, %d" % ((sCH, k) if k < 8 else (sW, k - 8)))
        a("s_cselect_b32 %s, 0x%x, 0" % (sT1, c << 8))
        a("s_xor_b32 %s, %s, %s" % (sBASE, sBASE, sT1))
    fa = [vT + k for k in range(7)] + [vKo]
    a("v_xor_b32 v%d, %s, v2" % (fa[0], sBASE), "addresses of the first burst")
    for g in range(1, 8): a("v_xor_b32 v%d, %s, v%d" % (fa[g], step(g), fa[g - 1]))
    a("s_lshl2_add_u32 %s, %s, %s" % (sQO, sH, sW)); a("s_lshl_b32 %s, %s, 7" % (sQO, sQO))
    for k in range(3):
        a("s_cmp_gt_u32 %s, %d" % (sW, k)); a("s_cbranch_scc0 L_go"); a("s_barrier")
    a("s_cmp_eq_u32 %s, %d" % (sW, NW))
    a("s_cbranch_scc1 L_helper")
    a("L_go:")
    a("s_cmp_lt_u32 %s, 3" % sW)
    a("s_waitcnt lgkmcnt(0)")
    a("s_load_dword %s, %s, %s" % (sPF, QS, sQO), "pull one line of q into L2")
    a("s_load_dword %s, %s, %s offset:64" % (sPF, QS, sQO))
    st(1)
    def load(i):
        g = i % G
        vo, base = (vKo, KS) if i < G else (vVo, VS)
        if i < 8: vo = fa[i]
        elif g: a("v_xor_b32 v%d, %s, v%d" % (vo, step(g), vo))
        a("global_load_dwordx4 v[%d:%d], v%d, %s nt" % (vD + 4 * g, vD + 4 * g + 3, vo, base))
    for i in range(7): load(i)
    a("s_cbranch_scc0 L_r0"); a("s_barrier"); a("L_r0:")
    load(7)
    for k in (2, 1):
        a("s_cmp_lt_u32 %s, %d" % (sW, k)); a("s_cbranch_scc0 L_go2"); a("s_barrier")
    a("L_go2:")
    a("s_load_dwordx8 s[12:19], s[0:1], 32", "v_tree, tree_mask, out, debug")
    a("s_load_dwordx2 s[20:21], s[0:1], 64", "ws")
    a("v_bfe_u32 v6, v0, 3, 1")
    a("v_lshl_or_b32 v7, v6, 8, v5")
    a("s_lshl_b32 %s, %s, 9" % (sT1, sH))
    a("v_or_b32 v7, %s, v7" % sT1)
    for i in range(4): a("v_mov_b64 v[%d:%d], 0" % (vQ0 + 2 * i, vQ0 + 2 * i + 1))
    a("s_mov_b32 exec_lo, 0x0f0f0f0f"); a("s_mov_b32 exec_hi, exec_lo")
    a("global_load_dwordx4 v[%d:%d], v7, %s" % (vQ0, vQ0 + 3, QS))
    a("s_not_b64 exec, exec")
    a("global_load_dwordx4 v[%d:%d], v7, %s" % (vQ1, vQ1 + 3, QS))
    a("s_mov_b64 exec, -1")
    t = vT
    a("v_and_b32 v1, 63, v0", "lane")
    a("v_lshlrev_b32 v%d, 4, v1" % vLin)
    a("v_bfe_i32 v%d, v0, 4, 1" % t); a("v_bfe_i32 v%d, v0, 5, 1" % (t + 1))
    a("v_and_b32 v%d, %s, v%d" % (t, sJ0, t)); a("v_and_b32 v%d, %s, v%d" % (t + 1, sJ1, t + 1))
    a("v_and_b32 v%d, 0xf0, v%d" % (vVo, vLin)); a("v_xor_b32 v%d, v%d, v%d" % (t, t, t + 1))
    a("v_xor_b32 v%d, %s, v%d" % (vVo, sBASE, vVo)); a("v_xor_b32 v%d, v%d, v%d" % (vVo, vVo, t), "V address")
    a("v_lshlrev_b32 v%d, 5, v6" % vMr)
    a("s_lshl_b32 %s, %s, 2" % (sT0, sW))
    a("v_add_u32 v%d, %s, v%d" % (vMw, sT0, vMr))
    a("s_and_b32 %s, %s, 15" % (sSP, sCH), "split")
    a("v_lshlrev_b32 v%d, 4, v0" % vDep)
    a("s_lshl_b32 %s, %s, 19" % (sCO, sH), "head area in ws")
    a("s_and_b32 %s, %s, 8" % (sT0, sSP))
    a("s_add_u32 %s, %s, %s" % (sT0, sT0, sCO))
    a("v_lshrrev_b32 v%d, 2, v1" % vSl)
    a("v_lshl_add_u32 v%d, v%d, 4, %s" % (vHa, vSl, sT0), "header of slot l>>2, query head of this column")
    a("s_mov_b32 %s, 0x%08x" % (sC, f2u(C_QK)), "log2(e) / sqrt(128)")
    a("v_and_b32 v%d, 1, v1" % t)
    a("v_lshlrev_b32 v%d, 4, v%d" % (t, t))
    a("v_mov_b32 v%d, 0xffff" % (t + 1))
    a("v_lshlrev_b32 v%d, v%d, v%d" % (t, t, t + 1))
    a("s_mov_b32 vcc_lo, 0x03030303"); a("s_mov_b32 vcc_hi, vcc_lo")
    for i in range(4):
        a("v_cndmask_b32 v%d, 0, v%d, vcc" % (vM + i, t))
        if i < 3: a("s_lshl_b64 vcc, vcc, 2")
    a("s_cmp_lt_u32 %s, 2" % sW)
    a("s_cselect_b64 vcc, -1, 0", "waves 0,1 pass a barrier after their burst, waves 2,3 before it")
    st(2)

    def burst(r, bar=None, wait=0):
        note("burst %d%s" % (r, "; barrier: " + bar if bar else ""))
        if bar: a("s_cbranch_vccnz L_ba%d" % r); a("s_barrier"); a("L_ba%d:" % r)
        for i in range(8 * r, 8 * r + 8):
            if r == 7: a("s_waitcnt vmcnt(7)")
            elif i % 8 == 0: a("s_waitcnt vmcnt(%d)" % wait)
            load(i)
        if bar: a("s_cbranch_vccz L_bb%d" % r); a("s_barrier"); a("L_bb%d:" % r)
    tile = lambda p: vR + 4 * (p % 8)
    def qk(g):
        d = tile(g // 2); q = (vQ0, vQ1)[g & 1]
        a("v_mfma_f32_16x16x32_bf16 v[%d:%d], v[%d:%d], v[%d:%d], %s" % (d, d + 3, vD + 4 * g, vD + 4 * g + 3, q, q + 3,
            "0" if g % 2 == 0 else "v[%d:%d]" % (d, d + 3)))
    t0, t1, t2 = vT, vT + 1, vT + 2
    def red2(p):
        for x in (p, p + 1):
            b = tile(x)
            a("v_add_f32_dpp v%d, v%d, v%d %s" % (b + 1, b, b + 1, dpp(0)))
            a("v_add_f32_dpp v%d, v%d, v%d %s" % (b + 3, b + 2, b + 3, dpp(2)))
        for x in (p, p + 1):
            b = tile(x)
            a("v_add_f32_dpp v%d, v%d, v%d %s" % (vP + x, b + 1, b + 3, dpp(1)))
        if p == 0: a("v_max_f32 v%d, v%d, v%d" % (t0, vP, vP + 1))
        else: a("v_max3_f32 v%d, v%d, v%d, v%d" % (t0, t0, vP + p, vP + p + 1))
    def ands(g):
        src = vP + g // 2; dst = vR + 4 * (g % 16)
        if g % 2 == 0: a("v_mov_b32_dpp v%d, v%d row_half_mirror %s" % (t2, src, full))
        for i in range(4):
            a("v_and_b32 v%d, v%d, v%d" % (dst + i, src if (i >> 1) == (g & 1) else t2, vM + i))
    def pv(g):
        s = vR + 4 * (g % 16)
        a("v_mfma_f32_16x16x32_bf16 v[%d:%d], v[%d:%d], v[%d:%d], %s" % (vA, vA + 3, s, s + 3, vD + 4 * g, vD + 4 * g + 3,
            "0" if g == 0 else "v[%d:%d]" % (vA, vA + 3)))
    P = G // 2

    burst(1, wait=2)
    burst(2)
    for g in range(16): qk(g)
    for p in (0, 2, 4, 6): red2(p)
    burst(3)
    for g in range(16, 24): qk(g)
    burst(4, "wave 4 may look at the die id now")
    for g in range(24, 32): qk(g)
    st(3)
    for p in (8, 10, 12, 14): red2(p)
    a("v_mov_b32 v%d, v%d" % (t1, t0)); a("s_nop 1")
    a("v_permlane32_swap_b32 v%d, v%d" % (t0, t1))
    a("v_max_f32 v%d, v%d, v%d" % (t0, t0, t1))
    a("v_mov_b32 v%d, v%d" % (t1, t0)); a("s_nop 1")
    a("v_permlane16_swap_b32 v%d, v%d" % (t0, t1))
    a("v_max_f32 v%d, v%d, v%d" % (t0, t0, t1)); a("s_nop 1")
    a("v_mov_b32_dpp v%d, v%d %s" % (t1, t0, dpp(3))); a("s_nop 1")
    a("v_max_f32_dpp v%d, v%d, v%d row_half_mirror %s" % (t0, t1, t1, full))
    a("v_mul_f32 v%d, %s, v%d" % (t0, sC, t0))
    a("ds_write_b32 v%d, v%d offset:%d" % (vMw, t0, LM))
    for p in range(P): a("v_mul_f32 v%d, %s, v%d" % (vP + p, sC, vP + p))
    a("s_waitcnt lgkmcnt(0)")
    burst(5, "all maxima posted")
    a("ds_read_b128 v[%d:%d], v%d offset:%d" % (vT + 4, vT + 7, vMr, LM))
    a("ds_read_b32 v%d, v%d offset:%d" % (vT + 3, vMr, LM + 16))
    a("s_waitcnt lgkmcnt(0)")
    a("v_max3_f32 v%d, v%d, v%d, v%d" % (t0, vT + 4, vT + 5, vT + 6))
    a("v_max3_f32 v%d, v%d, v%d, v%d" % (t0, t0, vT + 7, vT + 3), "workgroup maximum")
    for p in range(P): a("v_sub_f32 v%d, v%d, v%d" % (vP + p, vP + p, t0))
    for p in range(P): a("v_exp_f32_dpp v%d, v%d %s" % (vP + p, vP + p, dpp(3)))
    a("v_add_f32 v%d, v%d, v%d" % (t1, vP, vP + 1))
    for p in range(2, P): a("v_add_f32 v%d, v%d, v%d" % (t1, t1, vP + p))
    cv = lambda p: a("v_cvt_pk_bf16_f32 v%d, v%d, v%d" % (vP + p, vP + p, vP + p))
    a("v_mov_b32 v%d, v%d" % (t2, t1)); cv(0); cv(1)
    a("v_permlane32_swap_b32 v%d, v%d" % (t1, t2))
    a("v_add_f32 v%d, v%d, v%d" % (t1, t1, t2))
    a("v_mov_b32 v%d, v%d" % (t2, t1)); cv(2); cv(3)
    a("v_permlane16_swap_b32 v%d, v%d" % (t1, t2))
    a("v_add_f32 v%d, v%d, v%d" % (t2, t1, t2)); cv(4); cv(5)
    a("v_add_f32_dpp v%d, v%d, v%d row_half_mirror %s" % (t1, t2, t2, full))
    a("ds_write_b32 v%d, v%d offset:%d" % (vMw, t1, LL))
    for p in range(6, P): cv(p)
    for g in range(16): ands(g)
    for g in range(8): pv(g)
    a("s_waitcnt lgkmcnt(0)")
    st(4)
    burst(6, "all sums, the role word and the tree contribution posted")
    a("v_mov_b32 v%d, 0" % vRo)
    a("ds_read_b32 v%d, v%d offset:%d" % (vRo, vRo, LROLE))
    for g in range(8, 16): pv(g)
    for g in range(16, 32): ands(g)
    a("s_lshl_b32 %s, %s, 15" % (sT0, sCH))
    a("v_add_u32 v%d, %s, v%d" % (vT + 2, sT0, vLin), "column of this workgroup")
    a("s_waitcnt lgkmcnt(0)")
    a("v_readfirstlane_b32 %s, v%d" % (sFL, vRo), "1: shares the L2 of split 0")
    a("s_cmp_lg_u32 %s, %d" % (sW, FIN))
    burst(7)
    st(12)
    a("s_cbranch_scc1 L_lf")
    a("global_load_dword v%d, v%d, %s nt" % (vT + 1, vT + 2, WS), "last request of the CU: bring the column's lines into L2")
    a("L_lf:")
    a("s_cmp_lg_u32 %s, 0" % sW)
    a("s_cbranch_scc1 L_nh")
    a("global_load_dwordx2 v[%d:%d], v%d, %s offset:%d sc1" % (vH, vH + 1, vHa, WS, HDR), "headers")
    a("L_nh:")
    a("s_cselect_b32 %s, 0, %s" % (sT0, sFL))
    for g in range(16, 24): pv(g)
    a("s_cmp_eq_u32 %s, %d" % (sW, FIN))
    a("s_cbranch_scc1 L_fin")
    a("s_cmp_lg_u32 %s, 0" % sT0)
    for g in range(24, 32):
        a("s_waitcnt vmcnt(%d)" % (31 - g)); pv(g)
    st(5)
    a("s_nop 7")
    a("ds_write_b128 v%d, v[%d:%d]" % (vDep, vA, vA + 3))
    a("s_cbranch_scc1 L_poll")
    a("s_waitcnt lgkmcnt(0)")
    a("s_barrier")
    if ST: a("s_branch L_diag")
    a("L_exit:")
    a("s_endpgm")

    a("L_helper:")
    a("s_load_dwordx8 s[12:19], s[0:1], 32")
    a("s_load_dwordx2 s[20:21], s[0:1], 64")
    a("v_and_b32 v1, 63, v0")
    a("s_and_b32 %s, %s, 15" % (sSP, sCH))
    a("v_lshlrev_b32 v4, 4, v1")
    a("v_lshrrev_b32 v10, 5, v1", "query head of this lane")
    a("s_getreg_b32 %s, hwreg(HW_REG_XCC_ID, 0, 4)" % sIN)
    a("s_add_u32 %s, %s, 1" % (sIN, sIN), "die id + 1")
    a("s_lshl_b32 %s, %s, 4" % (sFO, sH), "debug words of this head")
    a("v_mov_b32 v18, %s" % sFO)
    a("v_mov_b64 v[44:45], -1"); a("v_mov_b64 v[46:47], -1")
    a("v_mov_b64 v[24:25], 0"); a("v_mov_b64 v[26:27], 0")
    a("v_mov_b32 v20, 0xff7fffff", "no tree token in this workgroup")
    a("v_mov_b32 v19, %s" % sIN)
    a("s_lshl_b32 %s, %s, 19" % (sCO, sH))
    a("s_lshl_b32 %s, %s, 8" % (sT1, sH))
    a("s_cmp_lg_u32 %s, 0" % sSP)
    a("s_waitcnt lgkmcnt(0)")
    st(1)
    a("s_cbranch_scc1 L_np")
    a("v_lshl_add_u32 v11, v1, 2, %s" % sCO)
    a("global_store_dword v11, v44, %s offset:%d" % (WS, HDR))
    a("s_waitcnt vmcnt(0)")
    a("s_mov_b64 exec, 1")
    a("global_store_dword v18, v19, %s sc1" % DBG)
    a("s_mov_b64 exec, -1")
    for k in range(4): a("s_load_dword %s, %s, %s offset:%d" % (sPF, WS, sCO, HDR + 64 * k))
    a("L_np:")
    st(2)
    a("s_cmp_lg_u32 %s, 1" % sSP)
    a("s_cbranch_scc1 L_nt")
    for k in range(4): a("s_load_dword %s, %s, %s offset:%d" % (sPF, KT, sT1, 64 * k))
    for k in range(4): a("s_load_dword %s, %s, %s offset:%d" % (sPF, VT, sT1, 64 * k))
    a("s_load_dword %s, %s, 0" % (sFV, MK))
    a("v_or_b32 v11, %s, v5" % sT1)
    a("v_bfe_u32 v12, v1, 3, 1")
    a("v_lshl_add_u32 v13, v12, 8, v11")
    a("v_add_u32 v13, %s, v13" % sT1)
    a("v_and_b32 v14, 15, v1")
    a("v_bfe_u32 v12, v1, 4, 1")
    a("v_lshl_add_u32 v14, v14, 1, v12")
    a("v_lshl_add_u32 v14, v14, 3, %s" % sT1)
    a("s_mov_b32 %s, 0x%08x" % (sC, f2u(C_QK)))
    a("s_waitcnt lgkmcnt(0)")
    a("global_load_dwordx4 v[36:39], v11, %s" % KT)
    a("global_load_dwordx4 v[40:43], v13, %s" % QS)
    a("global_load_dwordx2 v[28:29], v14, %s" % VT)
    a("s_waitcnt vmcnt(0)")
    a("v_mfma_f32_16x16x32_bf16 v[32:35], v[36:39], v[40:43], 0")
    a("s_lshl_b32 %s, %s, 16" % (sFV, sFV), "mask as f32")
    a("v_sub_f32 v11, 1.0, %s" % sFV)
    a("v_mul_f32 v11, 0x%08x, v11" % f2u(C_MASK))
    a("v_lshlrev_b32 v24, 16, v28")
    a("v_and_b32 v25, 0xffff0000, v28")
    a("v_lshlrev_b32 v26, 16, v29")
    a("v_and_b32 v27, 0xffff0000, v29")
    a("v_cmp_gt_u32 vcc, 32, v1")
    a("v_add_f32_dpp v33, v32, v33 %s" % dpp(0))
    a("v_add_f32_dpp v35, v34, v35 %s" % dpp(2))
    a("s_nop 0")
    a("v_add_f32_dpp v32, v33, v35 %s" % dpp(1))
    a("v_fma_f32 v32, v32, %s, v11" % sC)
    a("s_nop 1")
    a("v_mov_b32_dpp v33, v32 row_newbcast:3 %s" % full)
    a("v_mov_b32_dpp v34, v32 row_newbcast:11 %s" % full)
    a("v_cndmask_b32 v20, v34, v33, vcc")
    a("L_nt:")
    a("v_lshlrev_b32 v6, 5, v10")
    a("ds_write_b32 v6, v20 offset:%d" % (LM + 16), "takes part in the maximum")
    a("s_mov_b32 %s, %d" % (sT1, tries - 1))
    a("s_lshl_b32 %s, %s, 6" % (sT0, sSP)); a("s_or_b32 %s, %s, %s" % (sT0, sT0, sCO))
    a("v_lshrrev_b32 v8, 2, v1")
    a("v_lshl_or_b32 v9, v8, 15, %s" % sT0)
    a("v_and_b32 v11, 48, v4"); a("v_or_b32 v11, v11, v9", "this slot's piece of column l>>2")
    a("s_lshl_b32 %s, %s, 4" % (sT0, sSP)); a("s_add_u32 %s, %s, %s" % (sT0, sT0, sCO))
    a("v_lshl_add_u32 v21, v10, 3, %s" % sT0, "own header")
    a("s_waitcnt vmcnt(0) lgkmcnt(0)")
    a("s_barrier")
    a("s_load_dword %s, %s, %s" % (sFV, DBG, sFO))
    a("s_barrier", "maxima posted")
    a("L_fl:")
    a("s_waitcnt lgkmcnt(0)")
    a("s_cmp_lg_u32 %s, 0" % sFV)
    a("s_cbranch_scc1 L_fl2")
    a("s_sub_u32 %s, %s, 1" % (sT1, sT1))
    a("s_cbranch_scc1 L_fl2")
    a("s_load_dword %s, %s, %s glc" % (sFV, DBG, sFO))
    a("s_branch L_fl")
    a("L_fl2:")
    a("s_cmp_eq_u32 %s, %s" % (sFV, sIN))
    a("s_cselect_b32 %s, %d, 0" % (sFL, 1 if fast else 0))
    if slowsel is not None:
        a("s_lshr_b32 %s, 0x%x, %s" % (sT0, slowsel, sSP)); a("s_andn2_b32 %s, %s, %s" % (sFL, sFL, sT0))
    a("s_cmp_eq_u32 %s, 0" % sSP)
    a("s_cselect_b32 %s, 1, %s" % (sFL, sFL), "split 0 is local by definition")
    st(3)
    a("v_mov_b32 v22, %s" % sFL)
    a("v_mov_b32 v23, 0")
    a("ds_write_b32 v23, v22 offset:%d" % LROLE)
    a("s_cmp_eq_u32 %s, 0" % sFL)
    a("s_cbranch_scc1 L_nomk")
    a("global_store_dwordx4 v11, v[44:47], %s" % WS, "data invalid before the header becomes valid")
    a("L_nomk:")
    a("ds_read_b128 v[12:15], v6 offset:%d" % LM)
    a("s_waitcnt lgkmcnt(0)")
    a("v_max3_f32 v16, v12, v13, v14")
    a("v_max3_f32 v16, v16, v15, v20", "workgroup maximum")
    a("v_sub_f32 v20, v20, v16")
    a("v_exp_f32 v20, v20", "p of the tree token (0 elsewhere)")
    a("s_nop 0")
    for i in range(4): a("v_mul_f32 v%d, v20, v%d" % (24 + i, 24 + i))
    a("ds_write_b128 v4, v[24:27] offset:%d" % (FIN * 1024))
    a("s_waitcnt lgkmcnt(0)")
    st(4)
    a("s_barrier", "sums posted")
    a("ds_read_b128 v[12:15], v6 offset:%d" % LL)
    a("s_waitcnt lgkmcnt(0)")
    a("v_add_f32 v12, v12, v13")
    a("v_add_f32 v14, v14, v15")
    a("v_add_f32 v12, v12, v14")
    a("v_add_f32 v17, v12, v20", "workgroup sum")
    a("s_waitcnt vmcnt(0)")
    a("s_cbranch_scc1 L_hs")
    a("global_store_dwordx2 v21, v[16:17], %s offset:%d" % (WS, HDR))
    st(5)
    if ST: a("s_barrier"); a("s_branch L_diag")
    a("s_endpgm")
    a("L_hs:")
    a("global_store_dwordx2 v21, v[16:17], %s offset:%d sc1" % (WS, SLOW + HDR))
    a("s_waitcnt vmcnt(0)")
    if ST: a("s_barrier"); a("s_branch L_diag")
    a("s_endpgm")

    vB = vR
    a("L_poll:")
    a("v_and_b32 v%d, 3, v1" % (t + 3))
    a("v_lshrrev_b32 v%d, 4, v1" % t)
    a("v_lshl_add_u32 v%d, v%d, 3, v%d" % (t, t + 3, t))
    a("s_lshl_b32 %s, %s, 9" % (sT1, sH))
    a("v_lshl_add_u32 v%d, v%d, 1, %s" % (vOa, t, sT1))
    a("s_mov_b32 %s, 0" % sCL, "further columns to combine")
    a("s_cmp_eq_u32 %s, 0" % sSP)
    a("s_cselect_b32 %s, 0, -1" % sDN, "slots already copied (all, unless split 0)")
    a("s_mov_b32 %s, 0x%x" % (sRY, RY), "bound on polling")
    a("s_waitcnt lgkmcnt(0)")
    a("L_col:")
    a("s_lshl_b32 %s, %s, 6" % (sT0, sSP))
    a("s_and_b32 %s, %s, 0xc0" % (sT0, sT0))
    a("s_mul_i32 %s, %s, 34" % (sT1, sSP))
    a("s_and_b32 %s, %s, 0x108" % (sT1, sT1))
    a("s_or_b32 %s, %s, %s" % (sT0, sT0, sT1), "(c>>3)*256 + (c&3)*64 + ((c>>2)&1)*8")
    a("v_add_u32 v%d, %s, v%d" % (vT + 3, sT0, vOa))
    a("L_hc:")
    a("v_max_u32 v%d, v%d, v%d" % (vT + 4, vH, vH + 1))
    a("v_cmp_eq_u32 vcc, -1, v%d" % (vT + 4))
    a("s_cbranch_vccnz L_hr")
    a("L_hok:")
    st(8)
    def allred(op, x, src):
        y = x + 1
        a("%s_dpp v%d, v%d, v%d row_ror:8 %s" % (op, x, src, src, full)); a("s_nop 1")
        a("%s_dpp v%d, v%d, v%d row_ror:4 %s" % (op, x, x, x, full))
        a("v_mov_b32 v%d, v%d" % (y, x)); a("s_nop 1")
        a("v_permlane16_swap_b32 v%d, v%d" % (x, y))
        a("%s v%d, v%d, v%d" % (op, x, x, y))
        a("v_mov_b32 v%d, v%d" % (y, x)); a("s_nop 1")
        a("v_permlane32_swap_b32 v%d, v%d" % (x, y))
        a("%s v%d, v%d, v%d" % (op, x, x, y))
    allred("v_max_f32", vT + 4, vH)
    a("v_sub_f32 v%d, v%d, v%d" % (vH, vH, vT + 4))
    a("v_exp_f32 v%d, v%d" % (vH, vH)); a("s_nop 0")
    a("v_mul_f32 v%d, v%d, v%d" % (vH + 1, vH, vH + 1)); a("s_nop 1")
    allred("v_add_f32", vT + 4, vH + 1)
    a("v_rcp_f32 v%d, v%d" % (vT + 4, vT + 4))
    a("s_cmp_eq_u32 %s, 0" % sFL)
    a("v_mul_f32 v%d, v%d, v%d" % (vH, vH, vT + 4))
    a("s_cbranch_scc1 L_b0")
    a("s_mov_b32 %s, 0" % sFL)
    a("s_barrier", "partial outputs in LDS")
    st(9)
    a("L_b0:")
    a("global_load_dwordx4 v[%d:%d], v%d, %s sc1" % (vB, vB + 3, vT + 2, WS))
    a("s_waitcnt vmcnt(0)")
    a("L_bp:")
    a("global_load_dwordx4 v[%d:%d], v%d, %s nt" % (vB, vB + 3, vT + 2, WS))
    a("s_sub_u32 %s, %s, 1" % (sRY, sRY))
    a("s_cbranch_scc1 L_bok")
    a("s_waitcnt vmcnt(%d)" % (NP - 1))
    a("v_max3_u32 v%d, v%d, v%d, v%d" % (vT + 4, vB, vB + 1, vB + 2))
    a("v_max_u32 v%d, v%d, v%d" % (vT + 4, vT + 4, vB + 3))
    a("v_cmp_eq_u32 vcc, -1, v%d" % (vT + 4))
    a("s_cbranch_vccnz L_bp")
    a("L_bok:")
    st(10)
    for r in (0, 2, 1, 3): a("v_mul_f32 v%d, v%d, v%d" % (vA + r, vH, vB + r))
    a("s_cmp_eq_u32 %s, 0" % sCL)
    a("v_permlane32_swap_b32 v%d, v%d" % (vA, vA + 2))
    a("v_permlane32_swap_b32 v%d, v%d" % (vA + 1, vA + 3))
    a("v_add_f32 v%d, v%d, v%d" % (vA, vA, vA + 2))
    a("v_add_f32 v%d, v%d, v%d" % (vA + 1, vA + 1, vA + 3)); a("s_nop 1")
    a("v_permlane16_swap_b32 v%d, v%d" % (vA, vA + 1))
    a("v_add_f32 v%d, v%d, v%d" % (vA, vA, vA + 1)); a("s_nop 1")
    a("v_add_f32_dpp v%d, v%d, v%d row_ror:8 %s" % (vA, vA, vA, full)); a("s_nop 1")
    a("v_add_f32_dpp v%d, v%d, v%d row_ror:4 %s" % (vA, vA, vA, full))
    a("v_cvt_pk_bf16_f32 v%d, v%d, v%d" % (vA, vA, vA))
    st(11)
    a("global_store_short v%d, v%d, %s" % (vT + 3, vA, OUT))
    a("s_cbranch_scc0 L_more")
    if ST: a("s_branch L_diag")
    a("s_endpgm")

    lines.append("; ======== wave 3: its loads land last; adds the other waves' partials and publishes the slot")
    q = lambda w: vP + 4 * w
    def padd(d, x, y):
        a("v_pk_add_f32 v[%d:%d], v[%d:%d], v[%d:%d]" % (d, d + 1, x, x + 1, y, y + 1))
        a("v_pk_add_f32 v[%d:%d], v[%d:%d], v[%d:%d]" % (d + 2, d + 3, x + 2, x + 3, y + 2, y + 3))
    fpv = lambda g: (a("s_waitcnt vmcnt(%d)" % (32 - g)), pv(g))
    a("L_fin:")
    a("ds_read_b128 v[%d:%d], v%d" % (q(3), q(3) + 3, vDep), "tree contribution (or zeros)")
    a("s_lshl_b32 %s, %s, 6" % (sT0, sSP)); a("s_or_b32 %s, %s, %s" % (sT0, sT0, sCO))
    a("v_lshl_or_b32 v12, v%d, 15, %s" % (vSl, sT0))
    a("v_and_b32 v%d, 48, v%d" % (vSt, vLin)); a("v_or_b32 v%d, v%d, v12" % (vSt, vSt))
    a("s_cmp_eq_u32 %s, 0" % sFL)
    for g in (24, 25, 26): fpv(g)
    a("s_barrier", "partial outputs in LDS")
    st(6)
    for w in range(3): a("ds_read_b128 v[%d:%d], v%d offset:%d" % (q(w), q(w) + 3, vLin, w * 1024))
    for g in (27, 28, 29): fpv(g)
    a("s_waitcnt lgkmcnt(1)"); padd(q(0), q(0), q(1))
    a("s_waitcnt lgkmcnt(0)"); padd(q(2), q(2), q(3))
    fpv(30)
    padd(q(0), q(0), q(2))
    fpv(31)
    st(5)
    a("s_cbranch_scc1 L_bs")
    a("s_nop 6")
    padd(vA, vA, q(0))
    a("global_store_dwordx4 v%d, v[%d:%d], %s" % (vSt, vA, vA + 3, WS))
    st(7)
    if ST: a("s_branch L_diag")
    a("s_endpgm")
    a("L_bs:")
    a("s_lshl_b32 %s, 1, %s" % (sT0, sSP))
    a("s_lshl_b32 %s, %s, 4" % (sT1, sH))
    a("v_mov_b32 v2, %s" % sT0)
    a("v_mov_b32 v3, %s" % sT1)
    a("s_nop 2")
    padd(vA, vA, q(0))
    a("global_store_dwordx4 v%d, v[%d:%d], %s offset:%d sc1" % (vSt, vA, vA + 3, WS, SLOW))
    a("s_waitcnt vmcnt(0)")
    a("s_mov_b64 exec, 1")
    a("global_atomic_or v3, v2, %s offset:4 sc1" % DBG)
    if ST: a("s_branch L_diag")
    a("s_endpgm")

    a("L_more:")
    a("s_max_i32 %s, %s, 64" % (sRY, sRY))
    a("s_ff1_i32_b32 %s, %s" % (sSP, sCL))
    a("s_bitset0_b32 %s, %s" % (sCL, sSP))
    a("s_and_b32 %s, %s, 8" % (sT0, sSP))
    a("v_and_b32 v%d, -9, v%d" % (vHa, vHa))
    a("v_or_b32 v%d, %s, v%d" % (vHa, sT0, vHa))
    a("global_load_dwordx2 v[%d:%d], v%d, %s offset:%d sc1" % (vH, vH + 1, vHa, WS, HDR))
    a("s_lshl_b32 %s, %s, 15" % (sT0, sSP)); a("s_or_b32 %s, %s, %s" % (sT0, sT0, sCO))
    a("v_add_u32 v%d, %s, v%d" % (vT + 2, sT0, vLin))
    a("s_waitcnt vmcnt(0)")
    a("s_branch L_col")
    a("L_hr:")
    a("s_cmp_eq_u32 %s, 0" % sFL)
    a("s_cbranch_scc1 L_hr2")
    a("s_mov_b32 %s, 0" % sFL)
    a("s_barrier")
    a("L_hr2:")
    a("s_sub_u32 %s, %s, 1" % (sRY, sRY))
    a("s_cbranch_scc1 L_hto")
    a("s_cmp_eq_u32 %s, -1" % sDN)
    a("s_cbranch_scc1 L_hl")
    a("s_lshl_b32 %s, %s, 4" % (sT0, sH))
    a("v_mov_b32 v%d, %s" % (vT + 4, sT0))
    a("global_load_dword v%d, v%d, %s offset:4 sc1" % (vT + 4, vT + 4, DBG))
    a("s_waitcnt vmcnt(0)")
    a("v_readfirstlane_b32 %s, v%d" % (sT0, vT + 4))
    a("s_nop 0")
    a("s_andn2_b32 %s, %s, %s" % (sT0, sT0, sDN))
    a("s_cbranch_scc0 L_hl")
    a("s_ff1_i32_b32 %s, %s" % (sT0, sT0))
    a("s_bitset1_b32 %s, %s" % (sDN, sT0))
    a("s_bitset1_b32 %s, %s" % (sCL, sT0))
    a("s_lshl_b32 %s, %s, 6" % (sT1, sT0)); a("s_or_b32 %s, %s, %s" % (sT1, sT1, sCO))
    a("v_lshl_or_b32 v%d, v%d, 15, %s" % (vT + 4, vSl, sT1))
    a("v_and_b32 v%d, 48, v%d" % (vT + 5, vLin)); a("v_or_b32 v%d, v%d, v%d" % (vT + 4, vT + 4, vT + 5))
    a("s_lshl_b32 %s, %s, 4" % (sT0, sT0)); a("s_add_u32 %s, %s, %s" % (sT0, sT0, sCO))
    a("v_mov_b32 v%d, %s" % (vT + 5, sT0))
    a("global_load_dwordx4 v[%d:%d], v%d, %s offset:%d sc1" % (vB + 4, vB + 7, vT + 4, WS, SLOW))
    a("global_load_dwordx4 v[%d:%d], v%d, %s offset:%d sc1" % (vB + 8, vB + 11, vT + 5, WS, SLOW + HDR))
    a("s_waitcnt vmcnt(0)")
    a("global_store_dwordx4 v%d, v[%d:%d], %s" % (vT + 4, vB + 4, vB + 7, WS))
    a("s_waitcnt vmcnt(0)")
    a("global_store_dwordx4 v%d, v[%d:%d], %s offset:%d" % (vT + 5, vB + 8, vB + 11, WS, HDR))
    a("L_hl:")
    a("global_load_dwordx2 v[%d:%d], v%d, %s offset:%d sc1" % (vH, vH + 1, vHa, WS, HDR))
    a("s_waitcnt vmcnt(0)")
    a("s_branch L_hc")
    a("L_hto:")
    a("s_mov_b32 %s, 64" % sRY)
    a("s_branch L_hok")
    if ST:
        a("L_diag:")
        a("s_mov_b64 exec, -1")
        if ST == "st": st0.dump(sW, NW + 1, WS)
        else: st0.encode(int(ST), k=enc_k)
        a("s_endpgm")
    s = wrap("\n".join(lines) + "\n", NWG, (NW + 1) * 64, LDS, nv, nsgpr=96 if ST else 48)
    return s.replace('.amdgcn_target', DOC + '.amdgcn_target', 1)

if __name__ == "__main__":
    kw = {}
    for x in sys.argv[1:]:
        k, v = x.split("=")
        try: v = eval(v)
        except: pass
        kw[k] = v
    if "ST" in kw and kw["ST"] != "st": kw["ST"] = str(kw["ST"])
    sys.stdout.write(gen(**kw))
```
